```python
import torch

def _softmax(x, axis=-1):
    return torch.softmax(x, dim=axis)
def _gelu(x):
    return torch.nn.functional.gelu(x, approximate="tanh")
def _silu(x):
    return torch.nn.functional.silu(x)
def _sigmoid(x):
    return torch.sigmoid(x)
def _layernorm(x, axis=-1, eps=1e-5):
    m = x.mean(dim=axis, keepdim=True)
    v = x.var(dim=axis, keepdim=True, unbiased=False)
    return (x - m) / torch.sqrt(v + eps)
def _scatter_add(tgt, idx, src, axis=0):
    return tgt.clone().index_add_(axis, idx, src)
def _segment_sum(src, seg, n):
    out = torch.zeros((n,) + src.shape[1:], dtype=src.dtype)
    return out.index_add_(0, seg, src)
def _pad(x, pw):
    flat = tuple(v for pair in reversed(pw) for v in pair)
    return torch.nn.functional.pad(x, flat)

kernel_name = 'sequential_preLN__grouped_kv_mqa__dense_activation_squared_relu__prompt'

def setup_inputs():

    _w = (lambda a: (lambda t: t.to(torch.bfloat16) if t.is_floating_point() else t)(torch.as_tensor(a)))
    def _A_setup():
        B, S, D, H = 1, 2048, 512, 32
        Dh = D // H
        return {
            "x": _w((lambda *s: torch.randn(*s, dtype=torch.bfloat16) * 0.05)(B, S, D)),
            "wq": _w((lambda *s: torch.randn(*s, dtype=torch.bfloat16) * 0.05)(D, H * Dh)),
            "wk": _w((lambda *s: torch.randn(*s, dtype=torch.bfloat16) * 0.05)(D, Dh)),
            "wv": _w((lambda *s: torch.randn(*s, dtype=torch.bfloat16) * 0.05)(D, Dh)),
            "wo": _w((lambda *s: torch.randn(*s, dtype=torch.bfloat16) * 0.05)(H * Dh, D)),
        }
    _A_in = _A_setup()

    def _B_setup():
        B, S, D, F = 1, 2048, 512, 1792
        return {
            "x": _w((lambda *s: torch.randn(*s, dtype=torch.bfloat16) * 0.05)(B, S, D)),
            "w1": _w((lambda *s: torch.randn(*s, dtype=torch.bfloat16) * 0.05)(D, F)),
            "b1": _w((lambda *s: torch.randn(*s, dtype=torch.bfloat16) * 0.4)(F)),
            "w2": _w((lambda *s: torch.randn(*s, dtype=torch.bfloat16) * 0.05)(F, D)),
            "b2": _w((lambda *s: torch.randn(*s, dtype=torch.bfloat16) * 1.6)(D)),
        }
    _B_in = _B_setup()

    return {
        "A_x": _A_in["x"],
        "A_wq": _A_in["wq"],
        "A_wk": _A_in["wk"],
        "A_wv": _A_in["wv"],
        "A_wo": _A_in["wo"],
        "B_x": _B_in["x"],
        "B_w1": _B_in["w1"],
        "B_b1": _B_in["b1"],
        "B_w2": _B_in["w2"],
        "B_b2": _B_in["b2"],
    }

def reference(A_x, A_wq, A_wk, A_wv, A_wo, B_x, B_w1, B_b1, B_w2, B_b2):
    def _A_ref(x, wq, wk, wv, wo):
        B, S, D = x.shape
        H = 32
        Dh = D // H
        q = (lambda x, *d: x.permute(*d))((x @ wq).reshape(B, S, H, Dh), 0, 2, 1, 3)
        k = x @ wk
        v = x @ wv
        scores = torch.einsum("bhqd,bkd->bhqk", q, k) * (Dh ** -0.5)
        p = _softmax(scores, axis=-1)
        o = torch.einsum("bhqk,bkd->bhqd", p, v)
        return (lambda x, *d: x.permute(*d))(o, 0, 2, 1, 3).reshape(B, S, H * Dh) @ wo

    def _B_ref(x, w1, b1, w2, b2):
        h = torch.einsum("bsd,df->bsf", x, w1) + b1
        zero = torch.zeros_like(h)
        r = torch.where(h > zero, h, zero)
        h = r * r
        out = torch.einsum("bsf,fd->bsd", h, w2) + b2
        return out

    x = A_x
    h = x + _A_ref(_layernorm(x, axis=-1), A_wq, A_wk, A_wv, A_wo)
    h2 = h + _B_ref(_layernorm(h, axis=-1), B_w1, B_b1, B_w2, B_b2)
    return h2
```

```python
import re

class Asm:
    def __init__(self):
        self.lines = []
        self.uid = 0
    def __call__(self, s):
        for ln in s.split("\n"):
            ln = ln.strip()
            if ln:
                self.lines.append(ln)
    def label(self, name):
        self.lines.append(name + ":")
    def newlabel(self, base):
        self.uid += 1
        return f"L_{base}_{self.uid}"
    def comment(self, c):
        self.lines.append("; " + c)

def vr(base, n=1):
    return f"v{base}" if n == 1 else f"v[{base}:{base+n-1}]"
def sr(base, n=1):
    return f"s{base}" if n == 1 else f"s[{base}:{base+n-1}]"

REG_RE = re.compile(r"^(-|\|)?(abs\()?([vsa])(\d+)\)?\|?$")
RNG_RE = re.compile(r"^(-)?([vsa])\[(\d+):(\d+)\]$")

def parse_operand(tok):
    tok = tok.strip()
    m = RNG_RE.match(tok)
    if m:
        return [(m.group(2), i) for i in range(int(m.group(3)), int(m.group(4)) + 1)]
    m = REG_RE.match(tok)
    if m:
        return [(m.group(3), int(m.group(4)))]
    if tok == "vcc":
        return [("s", 106), ("s", 107)]
    if tok == "vcc_lo": return [("s", 106)]
    if tok == "vcc_hi": return [("s", 107)]
    if tok == "exec":
        return [("s", 126), ("s", 127)]
    if tok == "m0":
        return [("s", 124)]
    return []

TRANS = ("v_exp_f32", "v_log_f32", "v_rcp_f32", "v_rsq_f32", "v_sqrt_f32", "v_sin_f32", "v_cos_f32", "v_rcp_iflag_f32")

class Ins:
    __slots__ = ("text", "op", "w", "r", "kind", "passes", "srcC", "srcAB", "dpp", "nop", "dot", "dotAB")
    def __init__(self, text):
        self.text = text
        code = text.split(";")[0].strip()
        parts = code.split(None, 1)
        op = parts[0]
        self.op = op
        rest = parts[1] if len(parts) > 1 else ""
        toks = [t.strip() for t in rest.split(",")]
        ops = []
        for t in toks:
            sub = t.split()
            if sub:
                ops.append(sub[0])
        mods = rest
        self.dpp = ("row_" in mods) or ("quad_perm" in mods) or ("_dpp" in op) or ("wave_" in mods)
        self.w = set(); self.r = set(); self.kind = "other"; self.passes = 0
        self.srcC = set(); self.srcAB = set(); self.nop = 0
        self.dot = op.startswith("v_dot"); self.dotAB = set()
        if self.dot:
            for o in ops[1:3]: self.dotAB |= set(parse_operand(o))
        P = [parse_operand(o) for o in ops]
        base = op.replace("_e32", "").replace("_e64", "").replace("_dpp", "").replace("_sdwa", "")
        if op == "s_nop":
            self.kind = "nop"; self.nop = int(ops[0], 0) + 1
        elif op.startswith("v_mfma") or op.startswith("v_smfmac"):
            self.kind = "mfma"
            self.passes = 8 if "32x32" in op else 4
            self.w = set(P[0]); self.srcAB = set(P[1]) | set(P[2])
            if op.startswith("v_smfmac"):
                self.srcC = set(P[0]); self.srcAB |= set(P[3])
            else:
                self.srcC = set(P[3]) if len(P) > 3 else set()
            self.r = self.srcAB | self.srcC
        elif op.startswith("v_"):
            self.kind = "valu"
            if base in TRANS: self.kind = "trans"
            if base.startswith("v_cmp"):
                self.w = set(P[0]);
                for p in P[1:]: self.r |= set(p)
                if base.startswith("v_cmpx"): self.w |= {("s", 126), ("s", 127)}
            elif base in ("v_swap_b32", "v_permlane32_swap_b32", "v_permlane16_swap_b32"):
                self.w = set(P[0]) | set(P[1]); self.r = set(self.w)
                if "permlane" in base: self.kind = "permlane"
            elif base in ("v_readfirstlane_b32", "v_readlane_b32"):
                self.kind = "readlane"
                self.w = set(P[0])
                for p in P[1:]: self.r |= set(p)
            elif base in ("v_add_co_u32", "v_sub_co_u32", "v_addc_co_u32", "v_subb_co_u32", "v_subrev_co_u32"):
                self.w = set(P[0]) | set(P[1])
                for p in P[2:]: self.r |= set(p)
            else:
                self.w = set(P[0])
                for p in P[1:]: self.r |= set(p)
                if base in ("v_fmac_f32", "v_dot2c_f32_bf16", "v_pk_fmac_f16", "v_mac_f32", "v_writelane_b32") or self.dpp:
                    self.r |= set(P[0])
                if base == "v_cndmask_b32" and len(ops) == 3:
                    self.r |= {("s", 106), ("s", 107)}
        elif op.startswith("ds_"):
            self.kind = "ds"
            if op.startswith("ds_read") or op.startswith("ds_bpermute") or op.startswith("ds_permute") or op.startswith("ds_swizzle"):
                self.w = set(P[0])
                for p in P[1:]: self.r |= set(p)
            else:
                for p in P: self.r |= set(p)
        elif op.startswith("buffer_") or op.startswith("global_"):
            self.kind = "vmem"
            is_lds = re.search(r"\blds\b", mods) is not None
            if "load" in op and not is_lds:
                self.w = set(P[0])
                for p in P[1:]: self.r |= set(p)
            elif "atomic" in op and "sc0" in mods and op.startswith("buffer_"):
                self.w = set(P[0])
                for p in P: self.r |= set(p)
            elif "atomic" in op and "sc0" in mods:
                self.w = set(P[0])
                for p in P[1:]: self.r |= set(p)
            else:
                for p in P: self.r |= set(p)
                if is_lds:
                    self.r |= {("s", 124)}; self.kind = "vmem_lds"
                if "store" in op and ("x4" in op or "x3" in op):
                    self.kind = "vmem_wstore"
                    self.srcC = set(P[0]) if op.startswith("buffer_") else set(P[1])
        elif op.startswith("s_"):
            self.kind = "salu"
            if op in ("s_waitcnt", "s_barrier", "s_endpgm", "s_sleep", "s_setprio", "s_branch") or op.startswith("s_cbranch") :
                self.kind = "ctl"
            elif op.startswith("s_cmp") or op.startswith("s_bitcmp"):
                for p in P: self.r |= set(p)
            elif op.startswith("s_load") or op.startswith("s_memtime") or op.startswith("s_memrealtime") or op.startswith("s_buffer_load"):
                self.kind = "smem"
                self.w = set(P[0])
                for p in P[1:]: self.r |= set(p)
            else:
                self.w = set(P[0]) if P else set()
                for p in P[1:]: self.r |= set(p)
                if "saveexec" in op:
                    self.w |= {("s", 126), ("s", 127)}; self.r |= {("s", 126), ("s", 127)}

def isv(regs): return {x for x in regs if x[0] in "va"}
def iss(regs): return {x for x in regs if x[0] == "s"}
VALUK = ("valu", "trans", "permlane", "readlane")

def need(prev, cur):
    n = 0
    pk, ck = prev.kind, cur.kind
    if prev.dot and (prev.w & (cur.r | cur.w)):
        if not (cur.op == prev.op and not (prev.w & cur.dotAB)): n = max(n, 3)
    if pk in VALUK:
        wv = isv(prev.w); ws = iss(prev.w)
        if ck == "mfma" and (wv & cur.r): n = max(n, 2)
        if pk == "trans" and ck in VALUK + ("mfma",) and ck != "trans" and (wv & cur.r): n = max(n, 1)
        if pk == "trans" and ck == "trans" and (wv & cur.r): n = max(n, 1)
        if ck == "readlane" and (wv & cur.r): n = max(n, 1)
        if ck == "permlane" and (wv & cur.r): n = max(n, 2)
        if cur.dpp and ck in VALUK and (wv & cur.r): n = max(n, 2)
        if ws:
            if ck in VALUK and (ws & cur.r): n = max(n, 2 if ck != "readlane" else 4)
            if ck in ("vmem", "vmem_lds", "vmem_wstore") and (ws & cur.r): n = max(n, 5)
            if ck == "mfma" and (ws & {("s",126),("s",127)}): n = max(n, 4)
            if cur.dpp and (ws & {("s",126),("s",127)}): n = max(n, 5)
            if ck in ("salu", "smem") and (ws & cur.r): n = max(n, 1)
    if pk == "mfma":
        d = prev.w
        big = prev.passes == 8
        if ck in VALUK and (d & (cur.r | cur.w)): n = max(n, 12 if big else 8)
        if ck in ("ds", "vmem", "vmem_lds", "vmem_wstore") and (d & (cur.r | cur.w)): n = max(n, 12 if big else 8)
        if ck == "mfma":
            if d & cur.srcAB: n = max(n, 12 if big else 8)
            if d & cur.srcC:
                if not (cur.srcC == d and cur.passes == prev.passes): n = max(n, 10 if big else 6)
            if (d & cur.w) and not (cur.w == d): n = max(n, 10 if big else 6)
        if ck in VALUK and (prev.srcC & cur.w): n = max(n, 7 if big else 3)
    if pk == "salu" and ("s", 124) in prev.w and ck == "vmem_lds": n = max(n, 1)
    if pk == "vmem_wstore":
        if ck in VALUK and (prev.srcC & cur.w): n = max(n, 2)
        elif (prev.srcC & cur.w): n = max(n, 1)
    return n

def is_instr(ln):
    return not (ln.endswith(":") or ln.startswith(";") or ln.startswith(".") or ln.startswith("//"))

def hazard_pass(lines, window=20, verbose=False):
    out = []
    hist = []
    ninserted = 0
    def required(cur, hist):
        dist = 0; req = 0
        for p in reversed(hist):
            if p.kind != "nop":
                r = need(p, cur) - dist
                if r > req: req = r
                dist += 1
            else:
                dist += p.nop
            if dist >= window: break
        return req
    labels = {}
    for ln in lines:
        if not is_instr(ln):
            if ln.endswith(":"): labels[ln[:-1]] = len(out)
            out.append(ln); continue
        cur = Ins(ln)
        req = required(cur, hist)
        if req > 0:
            k = req
            while k > 0:
                t = min(k, 16)
                nop = f"s_nop {t-1}"
                out.append(nop); hist.append(Ins(nop)); k -= t
            ninserted += 1
            if verbose: print("hazard: inserted", req, "before", ln)
        out.append(ln); hist.append(cur)
        if cur.op in ("s_endpgm", "s_branch"):
            hist = []
    problems = []
    for i, ln in enumerate(out):
        if is_instr(ln) and (ln.startswith("s_cbranch") or ln.startswith("s_branch")):
            tgt = ln.split()[-1]
            if tgt in labels:
                h = [Ins(x) for x in out[max(0, i - 40):i + 1] if is_instr(x)]
                j = labels[tgt]
                j = out.index(tgt + ":")
                cnt = 0
                for x in out[j:]:
                    if not is_instr(x): continue
                    c = Ins(x)
                    r = required(c, h)
                    if r > 0 and c.kind != "nop":
                        problems.append(f"branch edge hazard: {ln} -> {x} needs {r} more")
                    h.append(c); cnt += 1
                    if cnt > 24 or c.op in ("s_endpgm", "s_branch"): break
    return out, ninserted, problems
```

```python
import sys
from asmlib import *

NAME = "sequential_preLN__grouped_kv_mqa__dense_activation_squared_relu__prompt"

WS_Q  = 0x000000
WS_KV = 0x200000
WS_KN = 0x220000
WS_O  = 0x300000
WS_H  = 0x500000
WS_ST = 0x700000
WS_H1 = 0x800000
WS_FL = 0x1000000
WS_SIZE = 0x1100000

C_SCALE = 0.25 * 1.4426950408889634
import struct
def f32(x): return "0x%08x" % struct.unpack("<I", struct.pack("<f", x))[0]

def srd(a, d, base, nbytes):
    a(f"s_mov_b32 s{d}, s{base}")
    a(f"s_mov_b32 s{d+1}, s{base+1}")
    a(f"s_mov_b32 s{d+2}, {nbytes}")
    a(f"s_mov_b32 s{d+3}, 0x20000")

def prologue(a, name):
    a(f"s_cmp_ge_u32 s2, 256")
    a(f"s_cbranch_scc1 L_end_{name}")
    a("v_lshrrev_b32 v2, 6, v0")
    a("v_and_b32 v1, 63, v0")
    a("s_and_b32 s4, s2, 7")
    a("v_readfirstlane_b32 s6, v2")
    a("s_lshl_b32 s4, s4, 2")
    a("s_lshr_b32 s3, s2, 3")
    a("s_and_b32 s3, s3, 3")
    a("s_or_b32 s4, s4, s3")
    a("s_lshr_b32 s5, s2, 5")

def ln_stats(a, vsum, vssq, vmean, vrstd, t):
    a(f"v_mul_f32 v{vmean}, {f32(1/512)}, v{vsum}")
    a(f"v_mul_f32 v{t}, {f32(1/512)}, v{vssq}")
    a(f"v_fma_f32 v{t}, -v{vmean}, v{vmean}, v{t}")
    a(f"v_max_f32 v{t}, 0, v{t}")
    a(f"v_cvt_pk_bf16_f32 v{vmean}, v{vmean}, v{t}")
    a(f"v_and_b32 v{t}, 0xffff0000, v{vmean}")
    a(f"v_lshlrev_b32 v{vmean}, 16, v{vmean}")
    a(f"v_add_f32 v{t}, {f32(1e-5)}, v{t}")
    a(f"v_cvt_pk_bf16_f32 v{t}, v{t}, v{t}")
    a(f"v_lshlrev_b32 v{t}, 16, v{t}")
    a(f"v_sqrt_f32 v{t}, v{t}")
    a(f"v_cvt_pk_bf16_f32 v{t}, v{t}, v{t}")
    a(f"v_lshlrev_b32 v{t}, 16, v{t}")
    a(f"v_rcp_f32 v{vrstd}, v{t}")

def allreduce32(a, v, t, op="v_add_f32"):
    a(f"v_mov_b32 v{t}, v{v}")
    a(f"v_permlane32_swap_b32 v{v}, v{t}")
    a(f"{op} v{v}, v{v}, v{t}")
def allreduce16(a, v, t, op="v_add_f32"):
    a(f"v_mov_b32 v{t}, v{v}")
    a(f"v_permlane16_swap_b32 v{v}, v{t}")
    a(f"{op} v{v}, v{v}, v{t}")

def k1(a):
    name = "k1"
    LX, LWQ, LWK = 0, 65536, 131072
    prologue(a, name)
    a("s_load_dwordx4 s[28:31], s[0:1], 0")
    a("s_load_dwordx4 s[32:35], s[0:1], 16")
    a("s_load_dwordx2 s[36:37], s[0:1], 96")
    a("v_lshlrev_b32 v2, 4, v1")
    a("s_and_b32 s3, s6, 1")
    a("s_lshl_b32 s3, s3, 7")
    a("v_xor_b32 v2, s3, v2")
    a("v_lshrrev_b32 v3, 3, v1")
    a("v_lshlrev_b32 v3, 10, v3")
    a("v_and_b32 v4, 7, v1")
    a("v_lshrrev_b32 v5, 2, v1")
    a("v_and_b32 v5, 4, v5")
    a("v_xor_b32 v4, v4, v5")
    a("v_lshl_add_u32 v3, v4, 4, v3")
    a("s_lshl_b32 s3, s5, 7")
    a("v_add_u32 v3, s3, v3")
    a("v_lshlrev_b32 v4, 4, v1")
    a("s_waitcnt lgkmcnt(0)")
    srd(a, 8, 36, WS_SIZE)
    srd(a, 12, 28, 2048*1024)
    srd(a, 16, 30, 512*1024)
    a("s_lshl_b32 s40, s4, 6")
    a("s_lshl_b32 s41, s6, 3")
    a("s_add_u32 s40, s40, s41")
    a("s_lshl_b32 s40, s40, 10")
    a("s_lshl_b32 s41, s41, 10")
    a(f"s_add_u32 m0, s41, {LX}")
    for j in range(8):
        if j == 4:
            a("s_add_u32 s40, s40, 4096")
            a("s_add_u32 m0, m0, 4096")
        a(f"v_xor_b32 v5, {16*j}, v2")
        a(f"buffer_load_dwordx4 v5, s[12:15], s40 offen offset:{(j%4)*1024} lds")
    a("s_cmp_ge_u32 s5, 2")
    a("s_cbranch_scc1 L_k1_nokv_dma")
    a("s_cmp_lt_u32 s6, 4")
    a("s_cselect_b32 s20, s32, s34")
    a("s_cselect_b32 s21, s33, s35")
    a("s_mov_b32 s22, 16384")
    a("s_mov_b32 s23, 0x20000")
    a("s_and_b32 s40, s6, 3")
    a("s_lshl_b32 s40, s40, 12")
    a("s_lshl_b32 s41, s6, 12")
    a(f"s_add_u32 m0, s41, {LWK}")
    for j in range(4):
        a(f"buffer_load_dwordx4 v4, s[20:23], s40 offen offset:{j*1024} lds")
    a("L_k1_nokv_dma:")
    a("s_lshl_b32 s40, s6, 16")
    a("s_lshl_b32 s41, s6, 13")
    a(f"s_add_u32 m0, s41, {LWQ}")
    for j in range(8):
        a(f"buffer_load_dwordx4 v3, s[16:19], s40 offen lds")
        if j < 7:
            a("s_add_u32 s40, s40, 8192")
            a("s_add_u32 m0, m0, 1024")
    ONES = 68
    for i in range(4): a(f"v_mov_b32 v{ONES+i}, 0x3f803f80")
    a("s_cmp_ge_u32 s5, 2")
    a("s_cbranch_scc1 L_k1_nokv")
    a("v_and_b32 v6, 15, v1")
    a("v_lshrrev_b32 v7, 4, v1")
    a("s_lshl_b32 s40, s5, 5")
    a("s_and_b32 s41, s6, 1")
    a("s_lshl_b32 s42, s41, 4")
    a("s_add_u32 s40, s40, s42")
    a("v_add_u32 v8, s40, v6")
    a("v_lshlrev_b32 v8, 10, v8")
    a("v_xor_b32 v9, v7, v6")
    a("v_lshl_add_u32 v8, v9, 4, v8")
    a("s_lshr_b32 s43, s6, 1")
    a("s_lshl_b32 s44, s43, 8")
    a("v_add_u32 v8, s44, v8")
    a("v_lshlrev_b32 v9, 8, v7")
    a("v_lshl_add_u32 v9, v6, 3, v9")
    a("s_lshl_b32 s44, s43, 12")
    a(f"s_add_u32 s44, s44, {LWK}")
    a("v_add_u32 v9, s44, v9")
    for i in range(16): a(f"v_mov_b32 v{72+i}, 0")
    a("v_mov_b32 v88, 0\nv_mov_b32 v89, 0")
    a("s_waitcnt vmcnt(8)")
    a("s_barrier")
    for half in range(2):
        for i in range(2*half, 2*half+2):
            a(f"v_xor_b32 v10, {64*i}, v8")
            a(f"ds_read_b128 v[{20+4*i}:{23+4*i}], v10")
            for t in range(2):
                a(f"ds_read_b64_tr_b16 v[{36+4*i+2*t}:{37+4*i+2*t}], v9 offset:{1024*i+128*t}")
                a(f"ds_read_b64_tr_b16 v[{52+4*i+2*t}:{53+4*i+2*t}], v9 offset:{16384+1024*i+128*t}")
    for i in range(4):
        if i == 0: a("s_waitcnt lgkmcnt(10)")
        elif i == 1: a("s_waitcnt lgkmcnt(5)")
        elif i == 2: a("s_waitcnt lgkmcnt(5)") if False else a("s_waitcnt lgkmcnt(5)")
        else: a("s_waitcnt lgkmcnt(0)")
        xf, kf, vf = vr(20+4*i, 4), vr(36+4*i, 4), vr(52+4*i, 4)
        a(f"v_mfma_f32_16x16x32_bf16 v[72:75], {kf}, {xf}, v[72:75]")
        a(f"v_mfma_f32_16x16x32_bf16 v[76:79], {xf}, {vf}, v[76:79]")
        a(f"v_mfma_f32_16x16x32_bf16 v[80:83], {kf}, v[68:71], v[80:83]")
        a(f"v_mfma_f32_16x16x32_bf16 v[84:87], v[68:71], {vf}, v[84:87]")
        for j in range(4):
            a(f"v_dot2c_f32_bf16 v88, v{20+4*i+j}, v68")
            a(f"v_dot2c_f32_bf16 v89, v{20+4*i+j}, v{20+4*i+j}")
    a("s_barrier")
    a("v_lshlrev_b32 v10, 4, v1")
    a("s_lshl_b32 s44, s6, 12")
    a(f"s_add_u32 s44, s44, {LWK}")
    a("v_add_u32 v10, s44, v10")
    a("v_mov_b32 v85, v88\nv_mov_b32 v86, v89")
    a("ds_write_b128 v10, v[72:75]")
    a("ds_write_b128 v10, v[76:79] offset:1024")
    a("ds_write_b128 v10, v[80:83] offset:2048")
    a("ds_write_b128 v10, v[84:87] offset:3072")
    a("s_waitcnt vmcnt(0) lgkmcnt(0)")
    a("s_barrier")
    a("s_cmp_ge_u32 s6, 2")
    a("s_cbranch_scc1 L_k1_q")
    a("v_lshlrev_b32 v10, 4, v1")
    a("s_lshl_b32 s44, s6, 12")
    a(f"s_add_u32 s44, s44, {LWK}")
    a("v_add_u32 v10, s44, v10")
    for kq in range(1, 4):
        for j in range(4):
            a(f"ds_read_b128 v[{20+16*(kq-1)+4*j}:{23+16*(kq-1)+4*j}], v10 offset:{8192*kq+1024*j}")
    a("s_waitcnt lgkmcnt(0)")
    for kq in range(1, 4):
        for j in range(15):
            a(f"v_add_f32 v{72+j}, v{72+j}, v{20+16*(kq-1)+j}")
    allreduce16(a, 85, 10); allreduce16(a, 86, 11)
    allreduce32(a, 85, 10); allreduce32(a, 86, 11)
    ln_stats(a, 85, 86, 90, 91, 10)
    for r in range(4):
        a(f"v_fma_f32 v{72+r}, -v90, v{80+r}, v{72+r}")
    for r in range(4):
        a(f"v_mul_f32 v{72+r}, v{72+r}, v91")
    a("v_mul_f32 v12, v72, v72")
    for r in range(1, 4): a(f"v_fmac_f32 v12, v{72+r}, v{72+r}")
    a("v_cvt_pk_bf16_f32 v72, v72, v73")
    a("v_cvt_pk_bf16_f32 v73, v74, v75")
    a("s_lshl_b32 s40, s4, 1")
    a("s_add_u32 s40, s40, s5")
    a("s_lshr_b32 s41, s40, 2")
    a("s_lshl_b32 s41, s41, 13")
    a("s_and_b32 s42, s40, 3")
    a("s_lshl_b32 s43, s42, 10")
    a("s_add_u32 s43, s43, s41")
    a(f"s_add_u32 s43, s43, {WS_KV}")
    a("s_lshl_b32 s44, s6, 8")
    a("s_add_u32 s45, s43, s44")
    a("v_and_b32 v13, 1, v7")
    a("v_lshlrev_b32 v13, 9, v13")
    a("v_lshl_add_u32 v13, v6, 4, v13")
    a("v_lshrrev_b32 v14, 1, v7")
    a("v_lshl_add_u32 v13, v14, 3, v13")
    a("buffer_store_dwordx2 v[72:73], v13, s[8:11], s45 offen")
    allreduce16(a, 12, 10); allreduce32(a, 12, 10)
    for sh in (8, 4, 2, 1):
        a(f"v_max_f32_dpp v12, v12, v12 row_ror:{sh} row_mask:0xf bank_mask:0xf")
    a("s_lshl_b32 s44, s40, 1")
    a("s_add_u32 s44, s44, s6")
    a("s_lshl_b32 s44, s44, 2")
    a(f"s_add_u32 s44, s44, {WS_KN}")
    a("v_mov_b32 v14, 0")
    a("buffer_store_dword v12, v14, s[8:11], s44 offen")
    a("v_lshlrev_b32 v14, 4, v7")
    for r in range(4):
        a(f"v_add_u32 v15, {4*r}, v14")
        a(f"ds_bpermute_b32 v{20+r}, v15, v90")
        a(f"ds_bpermute_b32 v{24+r}, v15, v91")
    a("s_waitcnt lgkmcnt(0)")
    for r in range(4):
        a(f"v_fma_f32 v{76+r}, -v{20+r}, v84, v{76+r}")
    for r in range(4):
        a(f"v_mul_f32 v{76+r}, v{76+r}, v{24+r}")
    a("v_cvt_pk_bf16_f32 v76, v76, v77")
    a("v_cvt_pk_bf16_f32 v77, v78, v79")
    a("s_lshl_b32 s44, s42, 1")
    a("s_add_u32 s44, s44, s6")
    a("s_lshl_b32 s44, s44, 9")
    a("s_add_u32 s44, s44, s41")
    a(f"s_add_u32 s44, s44, {WS_KV+4096}")
    a("v_lshrrev_b32 v13, 1, v7")
    a("v_lshlrev_b32 v13, 8, v13")
    a("v_lshl_add_u32 v13, v6, 4, v13")
    a("v_and_b32 v14, 1, v7")
    a("v_lshl_add_u32 v13, v14, 3, v13")
    a("buffer_store_dwordx2 v[76:77], v13, s[8:11], s44 offen")
    a("s_branch L_k1_q")
    a("L_k1_nokv:")
    a("s_waitcnt vmcnt(0)")
    a("s_barrier")
    a("L_k1_q:")
    a("v_and_b32 v6, 31, v1")
    a("v_lshrrev_b32 v7, 5, v1")
    a("s_lshr_b32 s40, s6, 1")
    a("s_and_b32 s40, s40, 1")
    a("s_lshr_b32 s41, s6, 2")
    a("s_and_b32 s42, s6, 1")
    a("s_lshl_b32 s43, s40, 5")
    a("v_add_u32 v8, s43, v6")
    a("v_lshlrev_b32 v8, 10, v8")
    a("v_and_b32 v9, 15, v6")
    a("v_xor_b32 v9, v9, v7")
    a("v_lshl_add_u32 v8, v9, 4, v8")
    a("s_lshl_b32 s43, s41, 9")
    a("v_add_u32 v8, s43, v8")
    XA = 10
    for b in range(8): a(f"v_xor_b32 v{XA+b}, {32*b}, v8")
    a("v_and_b32 v2, 15, v1")
    a("v_lshrrev_b32 v3, 2, v2")
    a("v_lshlrev_b32 v3, 7, v3")
    a("v_lshl_add_u32 v3, v7, 10, v3")
    a("v_lshrrev_b32 v4, 4, v1")
    a("v_and_b32 v4, 1, v4")
    a("v_lshlrev_b32 v4, 1, v4")
    a("v_bfe_u32 v5, v2, 1, 1")
    a("v_add_u32 v4, v4, v5")
    a("s_lshl_b32 s43, s42, 2")
    a("v_add_u32 v4, s43, v4")
    a("v_lshrrev_b32 v5, 1, v2")
    a("v_and_b32 v5, 4, v5")
    a("v_xor_b32 v4, v4, v5")
    a("v_lshl_add_u32 v3, v4, 4, v3")
    a("v_and_b32 v5, 1, v2")
    a("v_lshl_add_u32 v3, v5, 3, v3")
    a("s_lshl_b32 s43, s41, 15")
    a(f"s_add_u32 s43, s43, {LWQ}")
    a("v_add_u32 v18, s43, v3")
    ACC, CS = 72, 88
    SUM, SSQ = 104, 105
    for i in range(32): a(f"v_mov_b32 v{72+i}, 0")
    a(f"v_mov_b32 v{SUM}, 0\nv_mov_b32 v{SSQ}, 0")
    XF = [20, 36]
    WF = [108, 124]
    def load_group(g):
        for ii in range(4):
            i = 4*g + ii
            a(f"ds_read_b128 {vr(XF[g&1]+4*ii,4)}, v{XA+(i&7)} offset:{256*(i>>3)}")
            for t in range(2):
                a(f"ds_read_b64_tr_b16 {vr(WF[g&1]+4*ii+2*t,2)}, v18 offset:{2048*i+512*t}")
    load_group(0)
    for g in range(4):
        if g < 3:
            load_group(g+1)
            a("s_waitcnt lgkmcnt(12)")
        else:
            a("s_waitcnt lgkmcnt(0)")
        for ii in range(4):
            xf, wf = vr(XF[g&1]+4*ii, 4), vr(WF[g&1]+4*ii, 4)
            a(f"v_mfma_f32_32x32x16_bf16 v[72:87], {wf}, {xf}, v[72:87]")
            for j in range(4):
                a(f"v_dot2c_f32_bf16 v{SUM}, v{XF[g&1]+4*ii+j}, v{ONES}")
            a(f"v_mfma_f32_32x32x16_bf16 v[88:103], {wf}, v[68:71], v[88:103]")
            for j in range(4):
                a(f"v_dot2c_f32_bf16 v{SSQ}, v{XF[g&1]+4*ii+j}, v{XF[g&1]+4*ii+j}")
    allreduce32(a, SUM, 2); allreduce32(a, SSQ, 3)
    a("s_cmp_eq_u32 s41, 0")
    a("s_cbranch_scc1 L_k1_noswap")
    a("s_nop 7")
    for r in range(8):
        a(f"v_swap_b32 v{ACC+r}, v{ACC+8+r}")
        a(f"v_swap_b32 v{CS+r}, v{CS+8+r}")
    a("L_k1_noswap:")
    a("s_barrier")
    a("v_lshlrev_b32 v2, 4, v1")
    a("s_lshl_b32 s43, s6, 13")
    a("v_add_u32 v2, s43, v2")
    a(f"ds_write_b128 v2, v[{ACC+8}:{ACC+11}]")
    a(f"ds_write_b128 v2, v[{ACC+12}:{ACC+15}] offset:1024")
    a(f"ds_write_b128 v2, v[{CS+8}:{CS+11}] offset:2048")
    a(f"ds_write_b128 v2, v[{CS+12}:{CS+15}] offset:3072")
    a(f"ds_write_b128 v2, v[{SUM}:{SUM+3}] offset:4096")
    a("s_waitcnt lgkmcnt(0)")
    a("s_barrier")
    a(f"v_xor_b32 v2, {4*8192}, v2")
    for j in range(5):
        a(f"ds_read_b128 v[{20+4*j}:{23+4*j}], v2 offset:{1024*j}")
    a("s_waitcnt lgkmcnt(0)")
    for r in range(8):
        a(f"v_add_f32 v{ACC+r}, v{ACC+r}, v{20+r}")
        a(f"v_add_f32 v{CS+r}, v{CS+r}, v{28+r}")
    a(f"v_add_f32 v{SUM}, v{SUM}, v36")
    a(f"v_add_f32 v{SSQ}, v{SSQ}, v37")
    ln_stats(a, SUM, SSQ, 106, 107, 2)
    a(f"v_mul_f32 v107, {f32(C_SCALE)}, v107")
    for r in range(8):
        a(f"v_fma_f32 v{ACC+r}, -v106, v{CS+r}, v{ACC+r}")
    for r in range(8):
        a(f"v_mul_f32 v{ACC+r}, v{ACC+r}, v107")
    for r in range(4):
        a(f"v_cvt_pk_bf16_f32 v{20+r}, v{ACC+2*r}, v{ACC+2*r+1}")
    a("s_lshl_b32 s43, s4, 1")
    a("s_add_u32 s43, s43, s40")
    a("s_lshl_b32 s43, s43, 5")
    a("s_lshl_b32 s44, s5, 2")
    a("s_add_u32 s43, s43, s44")
    a("s_lshl_b32 s44, s42, 1")
    a("s_add_u32 s43, s43, s44")
    a("s_add_u32 s43, s43, s41")
    a("s_lshl_b32 s43, s43, 10")
    a(f"s_add_u32 s43, s43, {WS_Q}")
    a("v_lshlrev_b32 v2, 4, v1")
    a("buffer_store_dwordx4 v[20:23], v2, s[8:11], s43 offen")
    a(f"L_end_{name}:")
    a("s_endpgm")
    return dict(vgpr=144, sgpr=64, lds=163840)


BOUND_T = 40.0
import os
SAFE = int(os.environ.get("SAFE", "0"))
def k2(a):
    name = "k2"
    RING, NSLOT, LONES = 0, 4, 32768
    Q, IDX, KA, VA = 4, 8, 9, 10
    C, S, O = 32, [48, 64], 80
    KF, VF = [96, 100], [104, 112]
    prologue(a, name)
    a("s_load_dwordx2 s[36:37], s[0:1], 96")
    a("v_lshlrev_b32 v2, 4, v1")
    a("s_lshr_b32 s40, s6, 1")
    a("s_and_b32 s40, s40, 1")
    a("s_lshr_b32 s41, s6, 2")
    a("s_and_b32 s42, s6, 1")
    a("s_lshl_b32 s43, s4, 1")
    a("s_add_u32 s43, s43, s40")
    a("s_lshl_b32 s43, s43, 5")
    a("s_lshl_b32 s44, s5, 2")
    a("s_add_u32 s43, s43, s44")
    a("s_lshl_b32 s44, s42, 1")
    a("s_add_u32 s43, s43, s44")
    a("s_add_u32 s43, s43, s41")
    a("s_lshl_b32 s46, s43, 10")
    a("s_lshl_b32 s47, s6, 10")
    a("v_add_u32 v3, s47, v2")
    a("v_lshlrev_b32 v14, 3, v1")
    a("s_waitcnt lgkmcnt(0)")
    srd(a, 8, 36, WS_SIZE)
    a(f"s_add_u32 s43, s46, {WS_Q}")
    a(f"buffer_load_dwordx4 v[{Q}:{Q+3}], v2, s[8:11], s43 offen")
    a(f"s_mov_b32 s43, {WS_KN}")
    a("buffer_load_dwordx2 v[16:17], v14, s[8:11], s43 offen")
    a(f"s_mov_b32 s48, {WS_KV}")
    for st in range(3):
        a(f"s_add_u32 m0, s47, {RING + st*8192}")
        a("buffer_load_dwordx4 v3, s[8:11], s48 offen lds")
        a("s_add_u32 s48, s48, 8192")
    a("v_mov_b32 v18, 0x3f803f80\nv_mov_b32 v19, 0x3f803f80")
    a("v_lshlrev_b32 v15, 3, v0")
    a(f"ds_write_b64 v15, v[18:19] offset:{LONES}")
    a(f"v_mov_b32 v{IDX}, 0xdddddddd")
    a(f"v_mov_b32 v{KA}, v2")
    a("v_and_b32 v15, 15, v1")
    a("v_lshrrev_b32 v18, 5, v1")
    a("v_lshl_add_u32 v15, v18, 4, v15")
    a("v_lshlrev_b32 v15, 4, v15")
    a("v_and_b32 v18, 16, v1")
    a("v_cmp_eq_u32 vcc, 0, v18")
    a(f"v_mov_b32 v19, {LONES}")
    for sl in range(4):
        a(f"v_add_u32 v18, {RING + sl*8192 + 4096}, v15")
        a(f"v_cndmask_b32 v{VA+sl}, v19, v18, vcc")
    for r in range(16): a(f"v_mov_b32 v{O+r}, 0")
    a("s_waitcnt vmcnt(3)")
    a("v_mov_b32 v18, 0")
    for j in range(4): a(f"v_dot2c_f32_bf16 v18, v{Q+j}, v{Q+j}")
    a("v_max_f32 v16, v16, v17")
    allreduce32(a, 18, 19)
    for sh in (8, 4, 2, 1):
        a(f"v_max_f32_dpp v16, v16, v16 row_ror:{sh} row_mask:0xf bank_mask:0xf")
    allreduce16(a, 16, 17, "v_max_f32"); allreduce32(a, 16, 17, "v_max_f32")
    a("v_mul_f32 v18, v18, v16")
    a("v_sqrt_f32 v18, v18")
    a(f"v_mov_b32 v19, {f32(0.01)}")
    a(f"v_fmac_f32 v19, {f32(1.01)}, v18")
    a(f"v_cmp_nle_f32 vcc, v19, {'v17'}") if False else None
    a(f"v_mov_b32 v17, {f32(BOUND_T)}")
    a("v_cmp_nle_f32 vcc, v19, v17")
    a("s_nop 4")
    a("s_cbranch_vccz L_k2_fast")
    a(f"v_mov_b32 v19, {f32(-3.0e38)}")
    a(f"s_mov_b32 s49, 0")
    a("L_k2_maxloop:")
    a("s_lshr_b32 s50, s49, 2")
    a("s_lshl_b32 s50, s50, 13")
    a("s_and_b32 s51, s49, 3")
    a("s_lshl_b32 s51, s51, 10")
    a("s_add_u32 s50, s50, s51")
    a(f"s_add_u32 s50, s50, {WS_KV}")
    a(f"buffer_load_dwordx4 v[{KF[0]}:{KF[0]+3}], v2, s[8:11], s50 offen")
    a("s_waitcnt vmcnt(0)")
    a(f"v_mfma_f32_32x32x16_bf16 {vr(S[0],16)}, {vr(KF[0],4)}, {vr(Q,4)}, 0")
    for r in range(16): a(f"v_max_f32 v19, v19, v{S[0]+r}")
    a("s_add_u32 s49, s49, 1")
    a("s_cmp_lt_u32 s49, 64")
    a("s_cbranch_scc1 L_k2_maxloop")
    allreduce32(a, 19, 18, "v_max_f32")
    a("L_k2_fast:")
    for r in range(16): a(f"v_sub_f32 v{C+r}, 0, v19")
    a("s_waitcnt vmcnt(1) lgkmcnt(0)")
    a("s_barrier")
    a(f"s_add_u32 m0, s47, {RING + 3*8192}")
    a("buffer_load_dwordx4 v3, s[8:11], s48 offen lds")
    a("s_add_u32 s48, s48, 8192")
    def kread(tt, buf):
        tt &= 15
        a(f"ds_read_b128 {vr(KF[buf],4)}, v{KA} offset:{RING + (tt>>2)*8192 + (tt&3)*1024}")
    def vread(tt, buf):
        tt &= 15
        for i in range(2):
            a(f"ds_read_b128 {vr(VF[buf]+4*i,4)}, v{VA+(tt>>2)} offset:{(2*(tt&3)+i)*512}")
    kread(0, 0); kread(1, 1); vread(0, 0)
    a("s_waitcnt lgkmcnt(3)")
    a(f"v_mfma_f32_32x32x16_bf16 {vr(S[0],16)}, {vr(KF[0],4)}, {vr(Q,4)}, {vr(C,16)}")
    a("s_nop 7\ns_nop 3")
    a("s_mov_b32 s49, 0")
    a("L_k2_loop:")
    for tt in range(16):
        sb = S[tt & 1]; sn = S[(tt+1) & 1]
        E = lambda r: a(f"v_exp_f32 v{sb+r}, v{sb+r}")
        for r in range(4): E(r)
        a("s_waitcnt lgkmcnt(2)")
        a(f"v_mfma_f32_32x32x16_bf16 {vr(sn,16)}, {vr(KF[(tt+1)&1],4)}, {vr(Q,4)}, {vr(C,16)}")
        kread(tt+2, tt & 1)
        for r in range(4, 10): E(r)
        a("s_waitcnt lgkmcnt(2)")
        if SAFE: a("s_nop 15\ns_nop 15\ns_nop 15")
        a(f"v_smfmac_f32_32x32x32_bf16 {vr(O,16)}, {vr(VF[tt&1],4)}, {vr(sb,8)}, v{IDX}")
        if SAFE: a("s_nop 15\ns_nop 15\ns_nop 15")
        for r in range(10, 16): E(r)
        vread(tt+1, (tt+1) & 1)
        a("s_waitcnt lgkmcnt(3)")
        if SAFE: a("s_nop 15\ns_nop 15\ns_nop 15")
        a(f"v_smfmac_f32_32x32x32_bf16 {vr(O,16)}, {vr(VF[tt&1]+4,4)}, {vr(sb+8,8)}, v{IDX}")
        if SAFE: a("s_nop 15\ns_nop 15\ns_nop 15")
        if (tt & 3) == 3:
            sl = tt >> 2
            a("s_waitcnt vmcnt(1)")
            a("s_barrier")
            a(f"s_min_u32 s50, s48, {WS_KV + 15*8192}")
            a(f"s_add_u32 m0, s47, {RING + sl*8192}")
            a("buffer_load_dwordx4 v3, s[8:11], s50 offen lds")
            a("s_add_u32 s48, s48, 8192")
    a("s_add_u32 s49, s49, 1")
    a("s_cmp_lt_u32 s49, 4")
    a("s_cbranch_scc1 L_k2_loop")
    a("s_nop 7\ns_nop 7")
    a(f"v_rcp_f32 v16, v{O+8}")
    for r in range(8): a(f"v_mul_f32 v{O+r}, v{O+r}, v16")
    for r in range(4): a(f"v_cvt_pk_bf16_f32 v{20+r}, v{O+2*r}, v{O+2*r+1}")
    a(f"s_add_u32 s43, s46, {WS_O}")
    a("buffer_store_dwordx4 v[20:23], v2, s[8:11], s43 offen")
    a("s_waitcnt vmcnt(0)")
    a(f"L_end_{name}:")
    a("s_endpgm")
    return dict(vgpr=120, sgpr=64, lds=36864)

def wslice_dma_voffset(a, vdst, t1, t2):
    a(f"v_lshrrev_b32 v{vdst}, 3, v1")
    a(f"v_lshlrev_b32 v{vdst}, 10, v{vdst}")
    a(f"v_and_b32 v{t1}, 7, v1")
    a(f"v_lshrrev_b32 v{t2}, 2, v1")
    a(f"v_and_b32 v{t2}, 4, v{t2}")
    a(f"v_xor_b32 v{t1}, v{t1}, v{t2}")
    a(f"v_lshl_add_u32 v{vdst}, v{t1}, 4, v{vdst}")
    a("s_lshl_b32 s3, s5, 7")
    a(f"v_add_u32 v{vdst}, s3, v{vdst}")

def wslice_frag_base(a, vdst, s_nt, derived, t):
    t0, t1, t2, t3 = t, t+1, t+2, t+3
    a(f"v_and_b32 v{t0}, 15, v1")
    a(f"v_lshrrev_b32 v{t1}, 2, v{t0}")
    a(f"v_lshlrev_b32 v{t1}, 7, v{t1}")
    a(f"v_lshrrev_b32 v{t2}, 5, v1")
    a(f"v_lshl_add_u32 v{t1}, v{t2}, {9 if derived else 10}, v{t1}")
    a(f"v_lshrrev_b32 v{t2}, 4, v1")
    a(f"v_and_b32 v{t2}, 1, v{t2}")
    a(f"v_lshlrev_b32 v{t2}, 1, v{t2}")
    a(f"v_bfe_u32 v{t3}, v{t0}, 1, 1")
    a(f"v_add_u32 v{t2}, v{t2}, v{t3}")
    a(f"s_lshl_b32 s3, s{s_nt}, 2")
    a(f"v_add_u32 v{t2}, s3, v{t2}")
    a(f"v_lshrrev_b32 v{t3}, 1, v{t0}")
    a(f"v_and_b32 v{t3}, 4, v{t3}")
    a(f"v_xor_b32 v{t2}, v{t2}, v{t3}")
    a(f"v_lshl_add_u32 v{t1}, v{t2}, 4, v{t1}")
    a(f"v_and_b32 v{t3}, 1, v{t0}")
    a(f"v_lshl_add_u32 v{vdst}, v{t3}, 3, v{t1}")

def k3(a):
    name = "k3"
    LO, LW = 0, 65536
    prologue(a, name)
    a("s_load_dwordx2 s[28:29], s[0:1], 0")
    a("s_load_dwordx2 s[30:31], s[0:1], 32")
    a("s_load_dwordx2 s[36:37], s[0:1], 96")
    a("v_lshlrev_b32 v2, 4, v1")
    wslice_dma_voffset(a, 3, 4, 5)
    a("s_lshr_b32 s40, s6, 1")
    a("s_and_b32 s40, s40, 1")
    a("s_lshr_b32 s41, s6, 2")
    a("s_and_b32 s42, s6, 1")
    a("v_and_b32 v6, 31, v1")
    a("v_lshrrev_b32 v7, 5, v1")
    a("s_lshl_b32 s43, s4, 6")
    a("s_lshl_b32 s44, s40, 5")
    a("s_add_u32 s43, s43, s44")
    a("v_add_u32 v8, s43, v6")
    a("v_lshlrev_b32 v9, 10, v8")
    a("v_lshl_add_u32 v9, v7, 3, v9")
    a("s_lshl_b32 s44, s5, 7")
    a("s_lshl_b32 s45, s42, 6")
    a("s_add_u32 s44, s44, s45")
    a("s_lshl_b32 s45, s41, 5")
    a("s_add_u32 s44, s44, s45")
    a("s_waitcnt lgkmcnt(0)")
    srd(a, 8, 36, WS_SIZE)
    srd(a, 12, 28, 2048*1024)
    srd(a, 16, 30, 512*1024)
    a("buffer_load_dwordx2 v[140:141], v9, s[12:15], s44 offen")
    a("buffer_load_dwordx2 v[142:143], v9, s[12:15], s44 offen offset:16")
    a("s_lshl_b32 s46, s4, 16")
    a("s_lshl_b32 s47, s6, 13")
    a("s_add_u32 s46, s46, s47")
    a(f"s_add_u32 s46, s46, {WS_O}")
    a(f"s_add_u32 m0, s47, {LO}")
    for j in range(8):
        if j == 4:
            a("s_add_u32 s46, s46, 4096")
            a("s_add_u32 m0, m0, 4096")
        a(f"buffer_load_dwordx4 v2, s[8:11], s46 offen offset:{(j%4)*1024} lds")
    a("s_lshl_b32 s46, s6, 16")
    a("s_lshl_b32 s47, s6, 13")
    a(f"s_add_u32 m0, s47, {LW}")
    for j in range(8):
        a(f"buffer_load_dwordx4 v3, s[16:19], s46 offen lds")
        if j < 7:
            a("s_add_u32 s46, s46, 8192")
            a("s_add_u32 m0, m0, 1024")
    ONES = 68
    a(f"v_mov_b32 v{ONES}, 0x3f803f80")
    a("s_lshl_b32 s43, s40, 15")
    a("s_lshl_b32 s44, s41, 14")
    a("s_add_u32 s43, s43, s44")
    a("v_add_u32 v10, s43, v2")
    wslice_frag_base(a, 18, 42, True, 12)
    a("s_lshl_b32 s43, s41, 15")
    a(f"s_add_u32 s43, s43, {LW}")
    a("v_add_u32 v18, s43, v18")
    ACC = 72
    for i in range(16): a(f"v_mov_b32 v{ACC+i}, 0")
    a("s_waitcnt vmcnt(0)")
    a("s_barrier")
    XF = [20, 36]; WF = [108, 124]
    def load_group(g):
        for ii in range(4):
            i = 4*g + ii
            a(f"ds_read_b128 {vr(XF[g&1]+4*ii,4)}, v10 offset:{1024*i}")
            for t in range(2):
                a(f"ds_read_b64_tr_b16 {vr(WF[g&1]+4*ii+2*t,2)}, v18 offset:{2048*i+1024*t}")
    load_group(0)
    for g in range(4):
        if g < 3:
            load_group(g+1)
            a("s_waitcnt lgkmcnt(12)")
        else:
            a("s_waitcnt lgkmcnt(0)")
        for ii in range(4):
            a(f"v_mfma_f32_32x32x16_bf16 {vr(ACC,16)}, {vr(WF[g&1]+4*ii,4)}, {vr(XF[g&1]+4*ii,4)}, {vr(ACC,16)}")
    a("s_nop 7\ns_nop 3")
    a("s_cmp_eq_u32 s41, 0")
    a("s_cbranch_scc1 L_k3_noswap")
    for r in range(8):
        a(f"v_swap_b32 v{ACC+r}, v{ACC+8+r}")
    a("L_k3_noswap:")
    a("s_barrier")
    a("s_lshl_b32 s43, s6, 11")
    a("v_add_u32 v2, s43, v2")
    a(f"ds_write_b128 v2, v[{ACC+8}:{ACC+11}]")
    a(f"ds_write_b128 v2, v[{ACC+12}:{ACC+15}] offset:1024")
    a("s_waitcnt lgkmcnt(0)")
    a("s_barrier")
    a(f"v_xor_b32 v2, {4*2048}, v2")
    a("ds_read_b128 v[20:23], v2")
    a("ds_read_b128 v[24:27], v2 offset:1024")
    for j in range(4):
        a(f"v_lshlrev_b32 v{28+2*j}, 16, v{140+j}")
        a(f"v_and_b32 v{29+2*j}, 0xffff0000, v{140+j}")
    a("s_waitcnt lgkmcnt(0)")
    for r in range(8):
        a(f"v_add_f32 v{ACC+r}, v{ACC+r}, v{20+r}")
    for r in range(8):
        a(f"v_add_f32 v{ACC+r}, v{ACC+r}, v{28+r}")
    for r in range(4):
        a(f"v_cvt_pk_bf16_f32 v{20+r}, v{ACC+2*r}, v{ACC+2*r+1}")
    a("s_lshl_b32 s43, s4, 1")
    a("s_add_u32 s43, s43, s40")
    a("s_lshl_b32 s43, s43, 5")
    a("s_lshl_b32 s44, s5, 2")
    a("s_lshl_b32 s45, s42, 1")
    a("s_add_u32 s44, s44, s45")
    a("s_add_u32 s44, s44, s41")
    a("s_add_u32 s43, s43, s44")
    a("s_lshl_b32 s43, s43, 10")
    a(f"s_add_u32 s43, s43, {WS_H}")
    a("v_lshlrev_b32 v2, 4, v1")
    a("buffer_store_dwordx4 v[20:23], v2, s[8:11], s43 offen")
    a("v_mov_b32 v24, 0\nv_mov_b32 v25, 0")
    for j in range(4):
        a(f"v_dot2c_f32_bf16 v24, v{20+j}, v{ONES}")
        a(f"v_dot2c_f32_bf16 v25, v{20+j}, v{20+j}")
    allreduce32(a, 24, 26); allreduce32(a, 25, 27)
    a("v_lshlrev_b32 v8, 8, v8")
    a("s_lshl_b32 s44, s44, 3")
    a(f"s_add_u32 s44, s44, {WS_ST}")
    a("buffer_store_dwordx2 v[24:25], v8, s[8:11], s44 offen")
    a("s_waitcnt vmcnt(0)")
    a(f"L_end_{name}:")
    a("s_endpgm")
    return dict(vgpr=144, sgpr=64, lds=131072)

def k4(a):
    name = "k4"
    LH, LW, NSL = 0, 65536, 3
    LST = 65536
    prologue(a, name)
    a("s_load_dwordx2 s[28:29], s[0:1], 48")
    a("s_load_dwordx2 s[30:31], s[0:1], 56")
    a("s_load_dwordx2 s[36:37], s[0:1], 96")
    a("v_lshlrev_b32 v2, 4, v1")
    a("v_lshrrev_b32 v6, 5, v1")
    a("v_and_b32 v7, 31, v1")
    a("s_mul_i32 s3, s5, 448")
    for jj in range(2):
        a(f"v_lshlrev_b32 v4, 2, v6")
        if jj: a("v_add_u32 v4, 8, v4")
        a("v_xor_b32 v4, v4, v7")
        a(f"v_lshlrev_b32 v4, 4, v4")
        a(f"v_mul_u32_u24 v5, 3584, v6")
        a(f"v_add_u32 v4, v4, v5")
        a(f"v_add_u32 v{8+jj}, s3, v4")
    a("s_waitcnt lgkmcnt(0)")
    srd(a, 8, 36, WS_SIZE)
    srd(a, 12, 28, 512*3584)
    srd(a, 16, 30, 1792*2)
    a("s_lshl_b32 s46, s4, 16")
    a("s_lshl_b32 s47, s6, 13")
    a("s_add_u32 s46, s46, s47")
    a(f"s_add_u32 s46, s46, {WS_H}")
    a(f"s_add_u32 m0, s47, {LH}")
    for j in range(8):
        if j == 4:
            a("s_add_u32 s46, s46, 4096")
            a("s_add_u32 m0, m0, 4096")
        a(f"buffer_load_dwordx4 v2, s[8:11], s46 offen offset:{(j%4)*1024} lds")
    a("s_mul_i32 s48, s6, 8*3584")
    a("s_lshl_b32 s47, s6, 12")
    def w1_stage(slot):
        a(f"s_add_u32 m0, s47, {LW + slot*32768}")
        a("s_mov_b32 s49, s48")
        for j in range(4):
            a(f"buffer_load_dwordx4 v{8+(j&1)}, s[12:15], s49 offen lds")
            if j < 3:
                a("s_add_u32 s49, s49, 7168")
                a("s_add_u32 m0, m0, 1024")
        a(f"s_add_u32 s48, s48, {64*3584}")
    w1_stage(0); w1_stage(1)
    a("s_cmp_eq_u32 s6, 7")
    a("s_cbranch_scc1 L_k4_stats")
    a("s_lshl_b32 s43, s6, 6")
    a("s_add_u32 s43, s43, s3")
    a("v_lshlrev_b32 v4, 3, v6")
    for g in range(4):
        a(f"buffer_load_dwordx2 v[{140+2*g}:{141+2*g}], v4, s[16:19], s43 offen offset:{16*g}")
    a("v_and_b32 v12, 15, v1")
    a("v_lshrrev_b32 v13, 2, v12")
    a("v_lshlrev_b32 v14, 9, v13")
    a("v_lshl_add_u32 v14, v6, 11, v14")
    a("v_lshrrev_b32 v15, 4, v1")
    a("v_and_b32 v15, 1, v15")
    a("v_lshlrev_b32 v15, 1, v15")
    a("v_bfe_u32 v16, v12, 1, 1")
    a("v_add_u32 v15, v15, v16")
    a("s_lshl_b32 s43, s6, 2")
    a("v_add_u32 v15, s43, v15")
    a("v_lshlrev_b32 v16, 2, v13")
    a("v_xor_b32 v15, v15, v16")
    a("v_lshl_add_u32 v14, v15, 4, v14")
    a("v_and_b32 v16, 1, v12")
    a("v_lshl_add_u32 v18, v16, 3, v14")
    ONES = 68
    for i in range(4): a(f"v_mov_b32 v{ONES+i}, 0x3f803f80")
    ACC = [72, 88]; CS = 104
    for i in range(48): a(f"v_mov_b32 v{72+i}, 0")
    XF = [20, 52]
    WF = [36, 120]
    XF = [20, 44]; WF = [36, 60]
    def load_group(gi):
        st, g2 = gi >> 1, gi & 1
        slot = st % NSL
        for ii in range(2):
            ks = 4*st + 2*g2 + ii
            for t in range(2):
                a(f"ds_read_b64_tr_b16 {vr(WF[gi&1]+4*ii+2*t,2)}, v18 offset:{(2*g2+ii)*16*512 + t*8*512}")
            for mb in range(2):
                off = (mb*32 + ks)*1024
                a(f"ds_read_b128 {vr(XF[gi&1]+8*ii+4*mb,4)}, v2 offset:{off}")
        return
    for sl in range(NSL):
        a(f"v_add_u32 v{12+sl}, {LW + sl*32768}, v18")
    def load_group(gi):
        st, g2 = gi >> 1, gi & 1
        slot = st % NSL
        for ii in range(2):
            ks = 4*st + 2*g2 + ii
            for t in range(2):
                a(f"ds_read_b64_tr_b16 {vr(WF[gi&1]+4*ii+2*t,2)}, v{12+slot} offset:{(2*g2+ii)*16*512 + t*8*512}")
            for mb in range(2):
                off = (mb*32 + ks)*1024
                a(f"ds_read_b128 {vr(XF[gi&1]+8*ii+4*mb,4)}, v2 offset:{off}")
    def mma_group(gi):
        for ii in range(2):
            wf = vr(WF[gi&1]+4*ii, 4)
            for mb in range(2):
                a(f"v_mfma_f32_32x32x16_bf16 {vr(ACC[mb],16)}, {wf}, {vr(XF[gi&1]+8*ii+4*mb,4)}, {vr(ACC[mb],16)}")
            a(f"v_mfma_f32_32x32x16_bf16 {vr(CS,16)}, {wf}, {vr(ONES,4)}, {vr(CS,16)}")
    for st in range(8):
        a("s_waitcnt vmcnt(4)" if st < 7 else "s_waitcnt vmcnt(0)")
        a("s_barrier")
        if st + 2 < 8: w1_stage((st + 2) % NSL)
        load_group(2*st)
        load_group(2*st+1)
        a("s_waitcnt lgkmcnt(8)")
        mma_group(2*st)
        a("s_waitcnt lgkmcnt(0)")
        mma_group(2*st+1)
    a("s_barrier")
    a("v_lshlrev_b32 v4, 3, v7")
    a(f"v_add_u32 v4, {LST}, v4")
    a(f"ds_read_b64 v[20:21], v4")
    a(f"ds_read_b64 v[22:23], v4 offset:256")
    for g in range(4):
        for h in range(2):
            a(f"v_lshlrev_b32 v{24+4*g+2*h}, 16, v{140+2*g+h}")
            a(f"v_and_b32 v{25+4*g+2*h}, 0xffff0000, v{140+2*g+h}")
    a("s_waitcnt lgkmcnt(0)")
    a("s_lshl_b32 s43, s4, 1")
    a("s_mul_i32 s43, s43, 112")
    a("s_mul_i32 s44, s5, 14")
    a("s_add_u32 s43, s43, s44")
    a("s_lshl_b32 s44, s6, 1")
    a("s_add_u32 s43, s43, s44")
    a("s_lshl_b32 s43, s43, 10")
    a(f"s_add_u32 s43, s43, {WS_H1}")
    for mb in range(2):
        mean, rstd = 20 + 2*mb, 21 + 2*mb
        for r in range(16):
            a(f"v_fma_f32 v{ACC[mb]+r}, -v{mean}, v{CS+r}, v{ACC[mb]+r}")
        for r in range(16):
            a(f"v_fma_f32 v{ACC[mb]+r}, v{ACC[mb]+r}, v{rstd}, v{24+r}")
        for r in range(16):
            a(f"v_max_f32 v{ACC[mb]+r}, 0, v{ACC[mb]+r}")
        for r in range(16):
            a(f"v_mul_f32 v{ACC[mb]+r}, v{ACC[mb]+r}, v{ACC[mb]+r}")
        for r in range(8):
            a(f"v_cvt_pk_bf16_f32 v{44+r}, v{ACC[mb]+2*r}, v{ACC[mb]+2*r+1}")
        a(f"buffer_store_dwordx4 v[44:47], v2, s[8:11], s43 offen")
        a(f"buffer_store_dwordx4 v[48:51], v2, s[8:11], s43 offen offset:1024")
        if mb == 0:
            a(f"s_add_u32 s43, s43, {112*1024}")
            a("s_nop 1")
    a("s_waitcnt vmcnt(0)")
    a("s_endpgm")
    a("L_k4_stats:")
    a("s_lshl_b32 s43, s4, 6")
    a("v_add_u32 v4, s43, v1")
    a("v_lshlrev_b32 v4, 8, v4")
    a(f"s_mov_b32 s44, {WS_ST}")
    for j in range(16):
        a(f"buffer_load_dwordx4 v[{20+4*j}:{23+4*j}], v4, s[8:11], s44 offen offset:{16*j}")
    a("s_waitcnt vmcnt(0)")
    for j in range(1, 32):
        a(f"v_add_f32 v20, v20, v{20+2*j}")
        a(f"v_add_f32 v21, v21, v{21+2*j}")
    ln_stats(a, 20, 21, 22, 23, 24)
    for st in range(8):
        a("s_waitcnt vmcnt(4)" if st < 7 else "s_waitcnt vmcnt(0)")
        a("s_barrier")
        if st + 2 < 8: w1_stage((st + 2) % NSL)
    a("v_lshlrev_b32 v4, 3, v1")
    a(f"v_add_u32 v4, {LST}, v4")
    a(f"ds_write_b64 v4, v[22:23]")
    a("s_waitcnt lgkmcnt(0)")
    a("s_barrier")
    a(f"L_end_{name}:")
    a("s_endpgm")
    return dict(vgpr=148, sgpr=64, lds=163840)

def k5(a):
    name = "k5"
    SLOT = 65536
    prologue(a, name)
    a("s_load_dwordx2 s[28:29], s[0:1], 64")
    a("s_load_dwordx2 s[30:31], s[0:1], 72")
    a("s_load_dwordx2 s[32:33], s[0:1], 80")
    a("s_load_dwordx2 s[36:37], s[0:1], 96")
    a("v_lshlrev_b32 v2, 4, v1")
    wslice_dma_voffset(a, 3, 4, 5)
    a("s_and_b32 s42, s6, 1")
    a("s_lshr_b32 s41, s6, 1")
    a("s_waitcnt lgkmcnt(0)")
    srd(a, 8, 36, WS_SIZE)
    srd(a, 12, 28, 1792*1024)
    srd(a, 16, 30, 1024)
    srd(a, 20, 32, 2048*1024)
    a("s_lshl_b32 s43, s4, 1")
    a("s_add_u32 s43, s43, s42")
    a("s_mul_i32 s43, s43, 112")
    a("s_mul_i32 s44, s41, 28")
    a("s_add_u32 s43, s43, s44")
    a("s_lshl_b32 s43, s43, 10")
    a(f"s_add_u32 s48, s43, {WS_H1}")
    a("s_mul_i32 s49, s41, 28*16*1024")
    a("s_lshl_b32 s44, s42, 15")
    a("s_add_u32 s49, s49, s44")
    a("s_lshl_b32 s47, s6, 12")
    def stage(slot):
        a(f"s_add_u32 m0, s47, {slot*SLOT}")
        for j in range(4):
            a(f"buffer_load_dwordx4 v2, s[8:11], s48 offen offset:{j*1024} lds")
        a(f"s_add_u32 m0, s47, {slot*SLOT + 32768}")
        a("s_mov_b32 s50, s49")
        for j in range(4):
            a(f"buffer_load_dwordx4 v3, s[12:15], s50 offen lds")
            if j < 3:
                a("s_add_u32 s50, s50, 8192")
                a("s_add_u32 m0, m0, 1024")
        a("s_add_u32 s48, s48, 4096")
        a("s_add_u32 s49, s49, 65536")
    stage(0); stage(1)
    wslice_frag_base(a, 18, 42, True, 12)
    a("s_lshl_b32 s43, s41, 13")
    a("s_add_u32 s43, s43, 32768")
    a("v_add_u32 v18, s43, v18")
    a(f"v_add_u32 v19, {SLOT}, v18")
    a("s_lshl_b32 s43, s41, 13")
    a("v_add_u32 v10, s43, v2")
    a(f"v_add_u32 v11, {SLOT}, v10")
    ACC = [72, 88]
    for i in range(32): a(f"v_mov_b32 v{72+i}, 0")
    XF = [20, 44]; WF = [36, 60]
    def load_group(st, g2):
        sl = st & 1
        for ii in range(2):
            ks = 2*g2 + ii
            for t in range(2):
                a(f"ds_read_b64_tr_b16 {vr(WF[g2]+4*ii+2*t,2)}, v{18+sl} offset:{ks*2048 + t*1024}")
            for mb in range(2):
                a(f"ds_read_b128 {vr(XF[g2]+8*ii+4*mb,4)}, v{10+sl} offset:{mb*4096 + ks*1024}")
    def mma_group(g2):
        for ii in range(2):
            for mb in range(2):
                a(f"v_mfma_f32_32x32x16_bf16 {vr(ACC[mb],16)}, {vr(WF[g2]+4*ii,4)}, {vr(XF[g2]+8*ii+4*mb,4)}, {vr(ACC[mb],16)}")
    for st in range(7):
        a("s_waitcnt vmcnt(8)" if st < 6 else "s_waitcnt vmcnt(0)")
        a("s_barrier")
        load_group(st, 0); load_group(st, 1)
        a("s_waitcnt lgkmcnt(8)")
        mma_group(0)
        a("s_waitcnt lgkmcnt(0)")
        mma_group(1)
        if st + 2 < 7:
            a("s_barrier")
            stage(st & 1)
    a("s_barrier")
    a("s_lshl_b32 s43, s6, 13")
    a("v_add_u32 v4, s43, v2")
    a("s_nop 7")
    for mb in range(2):
        for j in range(4):
            a(f"ds_write_b128 v4, {vr(ACC[mb]+4*j,4)} offset:{mb*4096 + j*1024}")
    a("s_lshr_b32 s40, s6, 1")
    a("s_and_b32 s40, s40, 1")
    a("s_lshr_b32 s44, s6, 2")
    a("s_lshl_b32 s43, s4, 1")
    a("s_add_u32 s43, s43, s40")
    a("s_lshl_b32 s43, s43, 5")
    a("s_lshl_b32 s45, s5, 2")
    a("s_add_u32 s43, s43, s45")
    a("s_lshl_b32 s45, s42, 1")
    a("s_add_u32 s43, s43, s45")
    a("s_add_u32 s43, s43, s44")
    a("s_lshl_b32 s43, s43, 10")
    a(f"s_add_u32 s43, s43, {WS_H}")
    a("buffer_load_dwordx4 v[60:63], v2, s[8:11], s43 offen")
    a("v_lshrrev_b32 v7, 5, v1")
    a("v_lshlrev_b32 v5, 3, v7")
    a("s_lshl_b32 s45, s5, 7")
    a("s_lshl_b32 s46, s42, 6")
    a("s_add_u32 s45, s45, s46")
    a("s_lshl_b32 s46, s44, 5")
    a("s_add_u32 s45, s45, s46")
    a("buffer_load_dwordx2 v[64:65], v5, s[16:19], s45 offen")
    a("buffer_load_dwordx2 v[66:67], v5, s[16:19], s45 offen offset:16")
    a("s_waitcnt lgkmcnt(0)")
    a("s_barrier")
    a("s_lshl_b32 s43, s42, 13")
    a("s_lshl_b32 s46, s40, 12")
    a("s_add_u32 s43, s43, s46")
    a("s_lshl_b32 s46, s44, 11")
    a("s_add_u32 s43, s43, s46")
    a("v_add_u32 v4, s43, v2")
    for kq in range(4):
        for j in range(2):
            a(f"ds_read_b128 v[{20+8*kq+4*j}:{23+8*kq+4*j}], v4 offset:{kq*16384 + j*1024}")
    a("s_waitcnt vmcnt(0) lgkmcnt(0)")
    for r in range(8):
        a(f"v_add_f32 v{20+r}, v{20+r}, v{28+r}")
        a(f"v_add_f32 v{36+r}, v{36+r}, v{44+r}")
    for j in range(4):
        a(f"v_lshlrev_b32 v{72+2*j}, 16, v{60+j}")
        a(f"v_and_b32 v{73+2*j}, 0xffff0000, v{60+j}")
        a(f"v_lshlrev_b32 v{80+2*j}, 16, v{64+j}")
        a(f"v_and_b32 v{81+2*j}, 0xffff0000, v{64+j}")
    for r in range(8):
        a(f"v_add_f32 v{20+r}, v{20+r}, v{36+r}")
        a(f"v_add_f32 v{72+r}, v{72+r}, v{80+r}")
    for r in range(8):
        a(f"v_add_f32 v{20+r}, v{20+r}, v{72+r}")
    for r in range(4):
        a(f"v_cvt_pk_bf16_f32 v{20+r}, v{20+2*r}, v{21+2*r}")
    a("v_and_b32 v6, 31, v1")
    a("s_lshl_b32 s43, s4, 6")
    a("s_lshl_b32 s46, s40, 5")
    a("s_add_u32 s43, s43, s46")
    a("v_add_u32 v6, s43, v6")
    a("v_lshlrev_b32 v6, 10, v6")
    a("v_add_u32 v6, v6, v5")
    a("buffer_store_dwordx2 v[20:21], v6, s[20:23], s45 offen")
    a("buffer_store_dwordx2 v[22:23], v6, s[20:23], s45 offen offset:16")
    a("s_waitcnt vmcnt(0)")
    a(f"L_end_{name}:")
    a("s_endpgm")
    return dict(vgpr=108, sgpr=64, lds=131072)

KERNELS = [("k1", k1), ("k2", k2), ("k3", k3), ("k4", k4), ("k5", k5)]


def build(kernels, path):
    hdr = []
    body = []
    descs = []
    for nm, fn in kernels:
        a = Asm()
        info = fn(a)
        lines, nins, probs = hazard_pass(a.lines)
        for p in probs: print("WARNING", nm, p)
        print(f"{nm}: {sum(1 for l in lines if is_instr(l))} instrs, {nins} hazard nops inserted")
        kn = f"{nm}_kernel"
        hdr.append(f"; @launch kernel={kn} grid=(256,1,1) block=(512,1,1) lds={info['lds']}")
        body.append(f".globl {kn}\n.p2align 8\n.type {kn},@function\n{kn}:")
        body += ["  " + l if is_instr(l) else l for l in lines]
        acc = (info['vgpr'] + 3) // 4 * 4
        descs.append(f""".p2align 6
.amdhsa_kernel {kn}
  .amdhsa_next_free_vgpr {info['vgpr']}
  .amdhsa_next_free_sgpr {info['sgpr']}
  .amdhsa_accum_offset {acc}
  .amdhsa_group_segment_fixed_size 0
  .amdhsa_kernarg_size 104
  .amdhsa_user_sgpr_count 2
  .amdhsa_user_sgpr_kernarg_segment_ptr 1
  .amdhsa_system_sgpr_workgroup_id_x 1
  .amdhsa_float_denorm_mode_32 3
.end_amdhsa_kernel""")
    txt = "\n".join(hdr) + '\n.amdgcn_target "amdgcn-amd-amdhsa--gfx950"\n.text\n' + "\n".join(body) + '\n.section .rodata,"a"\n' + "\n".join(descs) + "\n"
    open(path, "w").write(txt)

if __name__ == "__main__":
    out = sys.argv[1] if len(sys.argv) > 1 else "out.s"
    build(KERNELS, out)
```

```python
import sys, os, struct
from asmlib import *

NAME = "sequential_preLN__grouped_kv_mqa__dense_activation_squared_relu__prompt"
KNAME = NAME + "_kernel"

WS_GEN = 0x0
WS_KVF = 0x1000
WS_RDY = 0x2000
WS_KN  = 0x3000
WS_KV  = 0x10000
WS_W1P = 0x100000
WS_W2P = 0x300000
WS_WOP = 0x500000
WS_O   = 0x600000
WS_H   = 0x800000
WS_H1  = 0xA00000
WS_ST  = 0x1100000
WS_PROF = 0x1200000
WS_DQ  = 0x1300000
WS_SIZE = 0x1600000

C_SCALE = 0.25 * 1.4426950408889634
BOUND_T = 40.0
TAGADD = 0x9E3779B9
SPIN_MAX = 1 << 14

PROF  = int(os.environ.get("PROF", "0"))
DEBUG = int(os.environ.get("DEBUG", "0"))

def f32(x): return "0x%08x" % struct.unpack("<I", struct.pack("<f", x))[0]

S_TAG = 7
P_X, P_WQ, P_WK, P_WV, P_WO, P_W1, P_B1, P_W2, P_B2, P_OUT, P_DBG, P_WS = 28, 30, 32, 34, 36, 40, 42, 44, 46, 48, 50, 52
S_NT, S_KH, S_MB = 24, 25, 26
S_ERR = 27

def srd(a, d, base, nbytes):
    a(f"s_mov_b32 s{d}, s{base}")
    a(f"s_mov_b32 s{d+1}, s{base+1}")
    a(f"s_mov_b32 s{d+2}, {nbytes}")
    a(f"s_mov_b32 s{d+3}, 0x20000")

def ln_stats(a, vsum, vssq, vmean, vrstd, t):
    a(f"v_mul_f32 v{vmean}, {f32(1/512)}, v{vsum}")
    a(f"v_mul_f32 v{t}, {f32(1/512)}, v{vssq}")
    a(f"v_fma_f32 v{t}, -v{vmean}, v{vmean}, v{t}")
    a(f"v_max_f32 v{t}, 0, v{t}")
    a(f"v_cvt_pk_bf16_f32 v{vmean}, v{vmean}, v{t}")
    a(f"v_and_b32 v{t}, 0xffff0000, v{vmean}")
    a(f"v_lshlrev_b32 v{vmean}, 16, v{vmean}")
    a(f"v_add_f32 v{t}, {f32(1e-5)}, v{t}")
    a(f"v_cvt_pk_bf16_f32 v{t}, v{t}, v{t}")
    a(f"v_lshlrev_b32 v{t}, 16, v{t}")
    a(f"v_sqrt_f32 v{t}, v{t}")
    a(f"v_cvt_pk_bf16_f32 v{t}, v{t}, v{t}")
    a(f"v_lshlrev_b32 v{t}, 16, v{t}")
    a(f"v_rcp_f32 v{vrstd}, v{t}")

def allreduce32(a, v, t, op="v_add_f32"):
    a(f"v_mov_b32 v{t}, v{v}")
    a(f"v_permlane32_swap_b32 v{v}, v{t}")
    a(f"{op} v{v}, v{v}, v{t}")
def allreduce16(a, v, t, op="v_add_f32"):
    a(f"v_mov_b32 v{t}, v{v}")
    a(f"v_permlane16_swap_b32 v{v}, v{t}")
    a(f"{op} v{v}, v{v}, v{t}")

NSTAMP = [0]
def stamp(a, rt=False):
    if not PROF: return
    i = NSTAMP[0]; NSTAMP[0] += 1
    assert i < 32
    a("s_memrealtime s[62:63]" if rt else "s_memtime s[62:63]")
    a("s_waitcnt lgkmcnt(0)")
    a(f"s_mov_b32 s{64+i}, s62")
def stamp_flush(a):
    if not PROF: return
    n = NSTAMP[0]
    a("s_lshl_b32 s62, s2, 3")
    a("s_add_u32 s62, s62, s6")
    a("s_lshl_b32 s62, s62, 7")
    a(f"s_add_u32 s62, s62, {WS_PROF}")
    a("v_mov_b32 v2, 0")
    for i in range(n):
        a(f"v_mov_b32 v3, s{64+i}")
        a(f"buffer_store_dword v3, v2, s[8:11], s62 offen offset:{4*i}")
    a("s_waitcnt vmcnt(0)")

def spin_tail(a, lbl_loop, code):
    a("s_sub_u32 s59, s59, 1")
    a("s_cmp_lg_u32 s59, 0")
    a(f"s_cbranch_scc1 {lbl_loop}")
    a(f"s_or_b32 s{S_ERR}, s{S_ERR}, {code}")

def wslice_dma_voffset(a, vdst, t1, t2):
    a(f"v_lshrrev_b32 v{vdst}, 3, v1")
    a(f"v_lshlrev_b32 v{vdst}, 10, v{vdst}")
    a(f"v_and_b32 v{t1}, 7, v1")
    a(f"v_lshrrev_b32 v{t2}, 2, v1")
    a(f"v_and_b32 v{t2}, 4, v{t2}")
    a(f"v_xor_b32 v{t1}, v{t1}, v{t2}")
    a(f"v_lshl_add_u32 v{vdst}, v{t1}, 4, v{vdst}")
    a("s_lshl_b32 s3, s5, 7")
    a(f"v_add_u32 v{vdst}, s3, v{vdst}")

def prologue(a):
    a("s_cmp_ge_u32 s2, 256")
    a("s_cbranch_scc1 L_end")
    a("s_load_dwordx16 s[28:43], s[0:1], 0")
    a("s_load_dwordx8 s[44:51], s[0:1], 64")
    a("s_load_dwordx2 s[52:53], s[0:1], 96")
    a("v_lshrrev_b32 v2, 6, v0")
    a("v_and_b32 v1, 63, v0")
    a("s_and_b32 s4, s2, 7")
    a("v_readfirstlane_b32 s6, v2")
    a("s_lshl_b32 s4, s4, 2")
    a("s_lshr_b32 s3, s2, 3")
    a("s_and_b32 s3, s3, 3")
    a("s_or_b32 s4, s4, s3")
    a("s_lshr_b32 s5, s2, 5")
    a(f"s_mov_b32 s{S_ERR}, 0")
    a(f"s_and_b32 s{S_NT}, s6, 1")
    a(f"s_lshr_b32 s{S_KH}, s6, 1")
    a(f"s_and_b32 s{S_KH}, s{S_KH}, 1")
    a(f"s_lshr_b32 s{S_MB}, s6, 2")

RP = 144
def phase1(a):
    LX, LWQ, LWK = 0, 65536, 131072
    a("v_lshlrev_b32 v2, 4, v1")
    a("s_and_b32 s3, s6, 1")
    a("s_lshl_b32 s3, s3, 7")
    a("v_xor_b32 v2, s3, v2")
    wslice_dma_voffset(a, 3, 4, 5)
    a("v_lshlrev_b32 v4, 4, v1")
    a("s_waitcnt lgkmcnt(0)")
    a(f"s_load_dword s{S_TAG}, s[{P_WS}:{P_WS+1}], {WS_GEN}")
    srd(a, 8, P_WS, WS_SIZE)
    srd(a, 12, P_X, 2048*1024)
    srd(a, 16, P_WQ, 512*1024)
    a("s_lshl_b32 s54, s4, 6")
    a("s_lshl_b32 s55, s6, 3")
    a("s_add_u32 s54, s54, s55")
    a("s_lshl_b32 s54, s54, 10")
    a("s_lshl_b32 s55, s55, 10")
    a(f"s_add_u32 m0, s55, {LX}")
    for j in range(8):
        if j == 4:
            a("s_add_u32 s54, s54, 4096")
            a("s_add_u32 m0, m0, 4096")
        a(f"v_xor_b32 v5, {16*j}, v2")
        a(f"buffer_load_dwordx4 v5, s[12:15], s54 offen offset:{(j%4)*1024} lds")
    a("s_cmp_ge_u32 s5, 2")
    a("s_cbranch_scc1 L_p1_nokv_dma")
    a("s_cmp_lt_u32 s6, 4")
    a(f"s_cselect_b32 s20, s{P_WK}, s{P_WV}")
    a(f"s_cselect_b32 s21, s{P_WK+1}, s{P_WV+1}")
    a("s_mov_b32 s22, 16384")
    a("s_mov_b32 s23, 0x20000")
    a("s_and_b32 s54, s6, 3")
    a("s_lshl_b32 s54, s54, 12")
    a("s_lshl_b32 s55, s6, 12")
    a(f"s_add_u32 m0, s55, {LWK}")
    for j in range(4):
        a(f"buffer_load_dwordx4 v4, s[20:23], s54 offen offset:{j*1024} lds")
    a("L_p1_nokv_dma:")
    a("s_lshl_b32 s54, s6, 16")
    a("s_lshl_b32 s55, s6, 13")
    a(f"s_add_u32 m0, s55, {LWQ}")
    for j in range(8):
        a(f"buffer_load_dwordx4 v3, s[16:19], s54 offen lds")
        if j < 7:
            a("s_add_u32 s54, s54, 8192")
            a("s_add_u32 m0, m0, 1024")
    ONES = 68
    for i in range(4): a(f"v_mov_b32 v{ONES+i}, 0x3f803f80")
    a("s_waitcnt lgkmcnt(0)")
    a(f"s_add_u32 s{S_TAG}, s{S_TAG}, {TAGADD:#x}")
    a("s_cmp_ge_u32 s5, 2")
    a("s_cbranch_scc1 L_p1_nokv")
    a("v_and_b32 v6, 15, v1")
    a("v_lshrrev_b32 v7, 4, v1")
    a("s_lshl_b32 s54, s5, 5")
    a("s_and_b32 s55, s6, 1")
    a("s_lshl_b32 s56, s55, 4")
    a("s_add_u32 s54, s54, s56")
    a("v_add_u32 v8, s54, v6")
    a("v_lshlrev_b32 v8, 10, v8")
    a("v_xor_b32 v9, v7, v6")
    a("v_lshl_add_u32 v8, v9, 4, v8")
    a("s_lshr_b32 s57, s6, 1")
    a("s_lshl_b32 s58, s57, 8")
    a("v_add_u32 v8, s58, v8")
    a("v_lshlrev_b32 v9, 8, v7")
    a("v_lshl_add_u32 v9, v6, 3, v9")
    a("s_lshl_b32 s58, s57, 12")
    a(f"s_add_u32 s58, s58, {LWK}")
    a("v_add_u32 v9, s58, v9")
    for i in range(16): a(f"v_mov_b32 v{72+i}, 0")
    a("v_mov_b32 v88, 0\nv_mov_b32 v89, 0")
    a("s_waitcnt vmcnt(8)")
    a("s_barrier")
    for half in range(2):
        for i in range(2*half, 2*half+2):
            a(f"v_xor_b32 v10, {64*i}, v8")
            a(f"ds_read_b128 v[{20+4*i}:{23+4*i}], v10")
            for t in range(2):
                a(f"ds_read_b64_tr_b16 v[{36+4*i+2*t}:{37+4*i+2*t}], v9 offset:{1024*i+128*t}")
                a(f"ds_read_b64_tr_b16 v[{52+4*i+2*t}:{53+4*i+2*t}], v9 offset:{16384+1024*i+128*t}")
    for i in range(4):
        a(f"s_waitcnt lgkmcnt({[10,5,5,0][i]})")
        xf, kf, vf = vr(20+4*i, 4), vr(36+4*i, 4), vr(52+4*i, 4)
        a(f"v_mfma_f32_16x16x32_bf16 v[72:75], {kf}, {xf}, v[72:75]")
        a(f"v_mfma_f32_16x16x32_bf16 v[76:79], {xf}, {vf}, v[76:79]")
        a(f"v_mfma_f32_16x16x32_bf16 v[80:83], {kf}, v[68:71], v[80:83]")
        a(f"v_mfma_f32_16x16x32_bf16 v[84:87], v[68:71], {vf}, v[84:87]")
        for j in range(4):
            a(f"v_dot2c_f32_bf16 v88, v{20+4*i+j}, v68")
            a(f"v_dot2c_f32_bf16 v89, v{20+4*i+j}, v{20+4*i+j}")
    a("s_barrier")
    a("v_lshlrev_b32 v10, 4, v1")
    a("s_lshl_b32 s58, s6, 12")
    a(f"s_add_u32 s58, s58, {LWK}")
    a("v_add_u32 v10, s58, v10")
    a("v_mov_b32 v85, v88\nv_mov_b32 v86, v89")
    a("ds_write_b128 v10, v[72:75]")
    a("ds_write_b128 v10, v[76:79] offset:1024")
    a("ds_write_b128 v10, v[80:83] offset:2048")
    a("ds_write_b128 v10, v[84:87] offset:3072")
    a("s_waitcnt vmcnt(0) lgkmcnt(0)")
    a("s_barrier")
    a("s_cmp_ge_u32 s6, 2")
    a("s_cbranch_scc1 L_p1_q")
    for kq in range(1, 4):
        for j in range(4):
            a(f"ds_read_b128 v[{20+16*(kq-1)+4*j}:{23+16*(kq-1)+4*j}], v10 offset:{8192*kq+1024*j}")
    a("s_waitcnt lgkmcnt(0)")
    for kq in range(1, 4):
        for j in range(15):
            a(f"v_add_f32 v{72+j}, v{72+j}, v{20+16*(kq-1)+j}")
    allreduce16(a, 85, 10); allreduce16(a, 86, 11)
    allreduce32(a, 85, 10); allreduce32(a, 86, 11)
    ln_stats(a, 85, 86, 90, 91, 10)
    for r in range(4):
        a(f"v_fma_f32 v{72+r}, -v90, v{80+r}, v{72+r}")
    for r in range(4):
        a(f"v_mul_f32 v{72+r}, v{72+r}, v91")
    a("v_mul_f32 v12, v72, v72")
    for r in range(1, 4): a(f"v_fmac_f32 v12, v{72+r}, v{72+r}")
    a("v_cvt_pk_bf16_f32 v72, v72, v73")
    a("v_cvt_pk_bf16_f32 v73, v74, v75")
    a("s_lshl_b32 s54, s4, 1")
    a("s_add_u32 s54, s54, s5")
    a("s_lshl_b32 s57, s54, 10")
    a(f"s_add_u32 s57, s57, {WS_KV}")
    a("s_lshl_b32 s58, s6, 8")
    a("s_add_u32 s58, s57, s58")
    a("v_and_b32 v13, 1, v7")
    a("v_lshlrev_b32 v13, 9, v13")
    a("v_lshl_add_u32 v13, v6, 4, v13")
    a("v_lshrrev_b32 v14, 1, v7")
    a("v_lshl_add_u32 v13, v14, 3, v13")
    a("buffer_store_dwordx2 v[72:73], v13, s[8:11], s58 offen sc1")
    allreduce16(a, 12, 10); allreduce32(a, 12, 10)
    for sh in (8, 4, 2, 1):
        a(f"v_max_f32_dpp v12, v12, v12 row_ror:{sh} row_mask:0xf bank_mask:0xf")
    a("s_lshl_b32 s58, s54, 1")
    a("s_add_u32 s58, s58, s6")
    a("s_lshl_b32 s60, s58, 2")
    a(f"s_add_u32 s60, s60, {WS_KN}")
    a("v_mov_b32 v14, 0")
    a("buffer_store_dword v12, v14, s[8:11], s60 offen sc1")
    a("v_lshlrev_b32 v14, 4, v7")
    for r in range(4):
        a(f"v_add_u32 v15, {4*r}, v14")
        a(f"ds_bpermute_b32 v{20+r}, v15, v90")
        a(f"ds_bpermute_b32 v{24+r}, v15, v91")
    a("s_waitcnt lgkmcnt(0)")
    for r in range(4):
        a(f"v_fma_f32 v{76+r}, -v{20+r}, v84, v{76+r}")
    for r in range(4):
        a(f"v_mul_f32 v{76+r}, v{76+r}, v{24+r}")
    a("v_cvt_pk_bf16_f32 v76, v76, v77")
    a("v_cvt_pk_bf16_f32 v77, v78, v79")
    a("s_lshl_b32 s58, s58, 9")
    a(f"s_add_u32 s58, s58, {WS_KV+65536}")
    a("v_lshrrev_b32 v13, 1, v7")
    a("v_lshlrev_b32 v13, 8, v13")
    a("v_lshl_add_u32 v13, v6, 4, v13")
    a("v_and_b32 v14, 1, v7")
    a("v_lshl_add_u32 v13, v14, 3, v13")
    a("buffer_store_dwordx2 v[76:77], v13, s[8:11], s58 offen sc1")
    a("s_lshl_b32 s58, s54, 4")
    a("s_lshl_b32 s60, s6, 2")
    a("s_add_u32 s58, s58, s60")
    a(f"s_add_u32 s58, s58, {WS_KVF}")
    a(f"v_mov_b32 v12, s{S_TAG}")
    a("v_mov_b32 v14, 0")
    a("s_waitcnt vmcnt(0)")
    a("buffer_store_dword v12, v14, s[8:11], s58 offen sc1")
    a("s_branch L_p1_q")
    a("L_p1_nokv:")
    a("s_waitcnt vmcnt(0)")
    a("s_barrier")
    a("L_p1_q:")
    stamp(a)
    repack_loads(a)
    a("v_and_b32 v6, 31, v1")
    a("v_lshrrev_b32 v7, 5, v1")
    a(f"s_lshl_b32 s57, s{S_MB}, 5")
    a("v_add_u32 v8, s57, v6")
    a("v_lshlrev_b32 v8, 10, v8")
    a("v_and_b32 v9, 15, v6")
    a("v_xor_b32 v9, v9, v7")
    a("v_lshl_add_u32 v8, v9, 4, v8")
    a(f"s_lshl_b32 s57, s{S_KH}, 9")
    a("v_add_u32 v8, s57, v8")
    XA = 10
    for b in range(8): a(f"v_xor_b32 v{XA+b}, {32*b}, v8")
    a("v_and_b32 v2, 15, v1")
    a("v_lshrrev_b32 v3, 2, v2")
    a("v_lshlrev_b32 v3, 7, v3")
    a("v_lshl_add_u32 v3, v7, 10, v3")
    a("v_lshrrev_b32 v4, 4, v1")
    a("v_and_b32 v4, 1, v4")
    a("v_lshlrev_b32 v4, 1, v4")
    a("v_bfe_u32 v5, v2, 1, 1")
    a("v_add_u32 v4, v4, v5")
    a(f"s_lshl_b32 s57, s{S_NT}, 2")
    a("v_add_u32 v4, s57, v4")
    a("v_lshrrev_b32 v5, 1, v2")
    a("v_and_b32 v5, 4, v5")
    a("v_xor_b32 v4, v4, v5")
    a("v_lshl_add_u32 v3, v4, 4, v3")
    a("v_and_b32 v5, 1, v2")
    a("v_lshl_add_u32 v3, v5, 3, v3")
    a(f"s_lshl_b32 s57, s{S_KH}, 15")
    a(f"s_add_u32 s57, s57, {LWQ}")
    a("v_add_u32 v18, s57, v3")
    ACC, CS = 72, 88
    SUM, SSQ = 104, 105
    for i in range(32): a(f"v_mov_b32 v{72+i}, 0")
    a(f"v_mov_b32 v{SUM}, 0\nv_mov_b32 v{SSQ}, 0")
    XF = [20, 36]
    WF = [108, 124]
    def load_group(g):
        for ii in range(4):
            i = 4*g + ii
            a(f"ds_read_b128 {vr(XF[g&1]+4*ii,4)}, v{XA+(i&7)} offset:{256*(i>>3)}")
            for t in range(2):
                a(f"ds_read_b64_tr_b16 {vr(WF[g&1]+4*ii+2*t,2)}, v18 offset:{2048*i+512*t}")
    load_group(0)
    for g in range(4):
        if g < 3:
            load_group(g+1)
            a("s_waitcnt lgkmcnt(12)")
        else:
            a("s_waitcnt lgkmcnt(0)")
        for ii in range(4):
            xf, wf = vr(XF[g&1]+4*ii, 4), vr(WF[g&1]+4*ii, 4)
            a(f"v_mfma_f32_32x32x16_bf16 v[72:87], {wf}, {xf}, v[72:87]")
            for j in range(4):
                a(f"v_dot2c_f32_bf16 v{SUM}, v{XF[g&1]+4*ii+j}, v{ONES}")
            a(f"v_mfma_f32_32x32x16_bf16 v[88:103], {wf}, v[68:71], v[88:103]")
            for j in range(4):
                a(f"v_dot2c_f32_bf16 v{SSQ}, v{XF[g&1]+4*ii+j}, v{XF[g&1]+4*ii+j}")
    allreduce32(a, SUM, 2); allreduce32(a, SSQ, 3)
    a("s_nop 7")
    a(f"s_cmp_eq_u32 s{S_KH}, 0")
    a("s_cbranch_scc1 L_p1_noswap")
    for r in range(8):
        a(f"v_swap_b32 v{ACC+r}, v{ACC+8+r}")
        a(f"v_swap_b32 v{CS+r}, v{CS+8+r}")
    a("L_p1_noswap:")
    a("s_barrier")
    a("v_lshlrev_b32 v2, 4, v1")
    a("s_lshl_b32 s57, s6, 13")
    a("v_add_u32 v2, s57, v2")
    a(f"ds_write_b128 v2, v[{ACC+8}:{ACC+11}]")
    a(f"ds_write_b128 v2, v[{ACC+12}:{ACC+15}] offset:1024")
    a(f"ds_write_b128 v2, v[{CS+8}:{CS+11}] offset:2048")
    a(f"ds_write_b128 v2, v[{CS+12}:{CS+15}] offset:3072")
    a(f"ds_write_b128 v2, v[{SUM}:{SUM+3}] offset:4096")
    a("s_waitcnt lgkmcnt(0)")
    a("s_barrier")
    a(f"v_xor_b32 v2, {2*8192}, v2")
    for j in range(5):
        a(f"ds_read_b128 v[{20+4*j}:{23+4*j}], v2 offset:{1024*j}")
    a("s_waitcnt lgkmcnt(0)")
    for r in range(8):
        a(f"v_add_f32 v{ACC+r}, v{ACC+r}, v{20+r}")
        a(f"v_add_f32 v{CS+r}, v{CS+r}, v{28+r}")
    a(f"v_add_f32 v{SUM}, v{SUM}, v36")
    a(f"v_add_f32 v{SSQ}, v{SSQ}, v37")
    ln_stats(a, SUM, SSQ, 106, 107, 2)
    a(f"v_mul_f32 v107, {f32(C_SCALE)}, v107")
    for r in range(8):
        a(f"v_fma_f32 v{ACC+r}, -v106, v{CS+r}, v{ACC+r}")
    for r in range(8):
        a(f"v_mul_f32 v{ACC+r}, v{ACC+r}, v107")
    for r in range(4):
        a(f"v_cvt_pk_bf16_f32 v{4+r}, v{ACC+2*r}, v{ACC+2*r+1}")
    a("v_lshlrev_b32 v2, 4, v1")
    if DEBUG:
        chunk_qoh(a, 57)
        a(f"s_add_u32 s57, s57, {WS_DQ}")
        a("buffer_store_dwordx4 v[4:7], v2, s[8:11], s57 offen")

def chunk_qoh(a, sd):
    a(f"s_lshl_b32 s{sd}, s4, 1")
    a(f"s_add_u32 s{sd}, s{sd}, s{S_MB}")
    a(f"s_lshl_b32 s{sd}, s{sd}, 5")
    a("s_lshl_b32 s3, s5, 2")
    a(f"s_add_u32 s{sd}, s{sd}, s3")
    a(f"s_lshl_b32 s3, s{S_NT}, 1")
    a(f"s_add_u32 s{sd}, s{sd}, s3")
    a(f"s_add_u32 s{sd}, s{sd}, s{S_KH}")
    a(f"s_lshl_b32 s{sd}, s{sd}, 10")

def d16_chunk(a, dst, voff, srdreg, sbase, pitch):
    for j in range(8):
        row = j if j < 4 else 4 + j
        op = "buffer_load_ushort"
        if row * pitch < 4096:
            a(f"{op} v{dst + j}, v{voff}, s[{srdreg}:{srdreg+3}], s{sbase} offen offset:{row*pitch}")
        else:
            a(f"s_add_u32 s61, s{sbase}, {row*pitch}")
            a(f"{op} v{dst + j}, v{voff}, s[{srdreg}:{srdreg+3}], s61 offen")

def repack_loads(a):
    a("v_and_b32 v20, 31, v1")
    a("v_lshlrev_b32 v20, 1, v20")
    a("v_lshrrev_b32 v21, 5, v1")
    a("s_lshr_b32 s54, s6, 1")
    a("s_lshl_b32 s55, s4, 2")
    a("s_mul_i32 s56, s4, 3")
    a("s_add_u32 s56, s56, 16")
    a("s_cmp_lt_u32 s4, 16")
    a("s_cselect_b32 s55, s55, s56")
    a("s_cselect_b32 s56, 4, 3")
    a("s_add_u32 s55, s55, s54")
    a("s_cmp_lt_u32 s54, s56")
    a("s_cselect_b32 s58, 1, 0")
    a("s_cselect_b32 s55, s55, 0")
    a(f"s_mov_b32 s90, s55")
    a(f"s_mov_b32 s91, s58")
    srd(a, 16, P_W2, 1792*1024)
    a("v_lshl_add_u32 v22, v21, 12, v20")
    a("s_lshl_b32 s56, s55, 14")
    a("s_lshl_b32 s57, s5, 7")
    a("s_add_u32 s56, s56, s57")
    a(f"s_lshl_b32 s57, s{S_NT}, 6")
    a("s_add_u32 s56, s56, s57")
    d16_chunk(a, RP+8, 22, 16, 56, 1024)
    a("s_cmp_eq_u32 s6, 7")
    a("s_cbranch_scc1 L_rp_wo")
    srd(a, 16, P_W1, 512*3584)
    a("v_mul_u32_u24 v23, 4*3584, v21")
    a("v_add_u32 v23, v23, v20")
    a("s_mul_i32 s56, s4, 16*3584")
    a("s_mul_i32 s57, s5, 448")
    a("s_add_u32 s56, s56, s57")
    a("s_lshl_b32 s57, s6, 6")
    a("s_add_u32 s56, s56, s57")
    d16_chunk(a, RP, 23, 16, 56, 3584)
    a("s_branch L_rp_done")
    a("L_rp_wo:")
    srd(a, 16, P_WO, 512*1024)
    a("s_lshl_b32 s56, s4, 14")
    a("s_lshl_b32 s57, s5, 7")
    a("s_add_u32 s56, s56, s57")
    d16_chunk(a, RP, 22, 16, 56, 1024)
    a("s_add_u32 s56, s56, 64")
    d16_chunk(a, RP+16, 22, 16, 56, 1024)
    a("L_rp_done:")

def repack_stores_and_sentinels(a):
    a("s_waitcnt vmcnt(0)")
    for c in range(3):
        for j in range(4):
            a(f"v_lshl_or_b32 v{RP+8*c+j}, v{RP+8*c+2*j+1}, 16, v{RP+8*c+2*j}")
    a("s_cmp_eq_u32 s91, 0")
    a("s_cbranch_scc1 L_rp_now2")
    a("s_lshl_b32 s56, s5, 1")
    a(f"s_add_u32 s56, s56, s{S_NT}")
    a("s_mul_i32 s56, s56, 112")
    a("s_add_u32 s56, s56, s90")
    a("s_lshl_b32 s56, s56, 10")
    a(f"s_add_u32 s56, s56, {WS_W2P}")
    a(f"buffer_store_dwordx4 v[{RP+8}:{RP+11}], v2, s[8:11], s56 offen sc1")
    a("L_rp_now2:")
    a("s_cmp_eq_u32 s6, 7")
    a("s_cbranch_scc1 L_rp_st_wo")
    a("s_mul_i32 s56, s5, 7")
    a("s_add_u32 s56, s56, s6")
    a("s_lshl_b32 s56, s56, 5")
    a("s_add_u32 s56, s56, s4")
    a("s_lshl_b32 s56, s56, 10")
    a(f"s_add_u32 s56, s56, {WS_W1P}")
    a(f"buffer_store_dwordx4 v[{RP}:{RP+3}], v2, s[8:11], s56 offen sc1")
    a("s_branch L_rp_st_done")
    a("L_rp_st_wo:")
    a("s_lshl_b32 s56, s5, 6")
    a("s_add_u32 s56, s56, s4")
    a("s_lshl_b32 s56, s56, 10")
    a(f"s_add_u32 s56, s56, {WS_WOP}")
    a(f"buffer_store_dwordx4 v[{RP}:{RP+3}], v2, s[8:11], s56 offen sc1")
    a("s_add_u32 s56, s56, 32768")
    a(f"buffer_store_dwordx4 v[{RP+16}:{RP+19}], v2, s[8:11], s56 offen sc1")
    a("L_rp_st_done:")
    for i in range(4): a(f"v_mov_b32 v{20+i}, -1")
    chunk_qoh(a, 57)
    a(f"s_add_u32 s56, s57, {WS_O}")
    a("buffer_store_dwordx4 v[20:23], v2, s[8:11], s56 offen sc1")
    a(f"s_add_u32 s56, s57, {WS_H}")
    a("buffer_store_dwordx4 v[20:23], v2, s[8:11], s56 offen sc1")
    a("s_lshr_b32 s56, s57, 2")
    a(f"s_add_u32 s56, s56, {WS_ST}")
    a("s_mov_b64 exec, 0xffff")
    a("buffer_store_dwordx4 v[20:23], v2, s[8:11], s56 offen sc1")
    a("s_mov_b64 exec, -1")
    a("s_cmp_eq_u32 s6, 7")
    a("s_cbranch_scc1 L_sent_done")
    h1_chunk_base(a, 56)
    for mb in range(2):
        for j in range(2):
            a(f"buffer_store_dwordx4 v[20:23], v2, s[8:11], s56 offen offset:{1024*j} sc1")
        if mb == 0: a(f"s_add_u32 s56, s56, {112*1024}")
    a("L_sent_done:")

def h1_chunk_base(a, sd):
    a(f"s_mul_i32 s{sd}, s4, 224")
    a("s_mul_i32 s3, s5, 14")
    a(f"s_add_u32 s{sd}, s{sd}, s3")
    a("s_lshl_b32 s3, s6, 1")
    a(f"s_add_u32 s{sd}, s{sd}, s3")
    a(f"s_lshl_b32 s{sd}, s{sd}, 10")
    a(f"s_add_u32 s{sd}, s{sd}, {WS_H1}")

W1F = 128
def phase2(a):
    LK, LV, LONES = 0, 65536, 131072
    Q, IDX, KA, VA, VINC = 4, 8, 9, 10, 11
    C, S, O = 32, [48, 64], 80
    KF, VF = [96, 100], [104, 112]
    a("s_cmp_lg_u32 s6, 0")
    a("s_cbranch_scc1 L_kv_wait")
    a(f"s_mov_b32 s59, {SPIN_MAX}")
    a(f"s_mov_b32 s56, {WS_KVF}")
    a("L_kv_poll:")
    a("buffer_load_dwordx2 v[20:21], v2, s[8:11], s56 offen sc1")
    a("s_waitcnt vmcnt(0)")
    a(f"v_cmp_ne_u32 vcc, s{S_TAG}, v20")
    a(f"v_cmp_ne_u32 s[60:61], s{S_TAG}, v21")
    a("s_or_b64 vcc, vcc, s[60:61]")
    a("s_cbranch_vccz L_kv_wait")
    spin_tail(a, "L_kv_poll", 1)
    a("L_kv_wait:")
    a("s_barrier")
    stamp(a)
    a("v_lshlrev_b32 v14, 3, v1")
    a(f"s_mov_b32 s56, {WS_KN}")
    a("buffer_load_dwordx2 v[16:17], v14, s[8:11], s56 offen sc1")
    a("s_lshl_b32 s55, s6, 11")
    a(f"s_add_u32 s56, s55, {WS_KV}")
    for q in range(4):
        for part in range(2):
            off = q*16384 + part*65536
            a(f"s_add_u32 m0, s55, {off}")
            a(f"s_add_u32 s57, s56, {off}")
            for j in range(2):
                a(f"buffer_load_dwordx4 v2, s[8:11], s57 offen offset:{1024*j} sc1 lds")
    a("v_mov_b32 v18, 0x3f803f80\nv_mov_b32 v19, 0x3f803f80")
    a("v_lshlrev_b32 v15, 3, v0")
    a(f"v_add_u32 v15, {LONES}, v15")
    a(f"ds_write_b64 v15, v[18:19]")
    a(f"ds_write_b64 v15, v[18:19] offset:4096")
    a(f"ds_write_b64 v15, v[18:19] offset:8192")
    a(f"v_mov_b32 v{IDX}, 0xdddddddd")
    a(f"v_mov_b32 v{KA}, v2")
    a("v_and_b32 v15, 15, v1")
    a("v_lshrrev_b32 v18, 5, v1")
    a("v_lshl_add_u32 v15, v18, 4, v15")
    a("v_lshlrev_b32 v15, 4, v15")
    a("v_and_b32 v18, 16, v1")
    a("v_cmp_eq_u32 vcc, 0, v18")
    a(f"v_mov_b32 v19, {LONES}")
    a(f"v_add_u32 v18, {LV}, v15")
    a(f"v_cndmask_b32 v{VA}, v19, v18, vcc")
    a(f"v_mov_b32 v19, 0")
    a(f"v_mov_b32 v18, 8192")
    a(f"v_cndmask_b32 v{VINC}, v19, v18, vcc")
    for r in range(16): a(f"v_mov_b32 v{O+r}, 0")
    a("v_mov_b32 v18, 0")
    for j in range(4): a(f"v_dot2c_f32_bf16 v18, v{Q+j}, v{Q+j}")
    allreduce32(a, 18, 19)
    a("s_waitcnt vmcnt(16)")
    a("v_max_f32 v16, v16, v17")
    for sh in (8, 4, 2, 1):
        a(f"v_max_f32_dpp v16, v16, v16 row_ror:{sh} row_mask:0xf bank_mask:0xf")
    allreduce16(a, 16, 17, "v_max_f32"); allreduce32(a, 16, 17, "v_max_f32")
    a("v_mul_f32 v18, v18, v16")
    a("v_sqrt_f32 v18, v18")
    a(f"v_mov_b32 v19, {f32(0.01)}")
    a(f"v_fmac_f32 v19, {f32(1.01)}, v18")
    a(f"v_mov_b32 v17, {f32(BOUND_T)}")
    a("v_cmp_nle_f32 vcc, v19, v17")
    a("s_nop 4")
    a("s_cbranch_vccz L_p2_fast")
    a(f"v_mov_b32 v19, {f32(-3.0e38)}")
    a(f"s_mov_b32 s57, {WS_KV}")
    a("L_p2_maxloop:")
    a(f"buffer_load_dwordx4 v[{KF[0]}:{KF[0]+3}], v2, s[8:11], s57 offen sc1")
    a("s_waitcnt vmcnt(0)")
    a(f"v_mfma_f32_32x32x16_bf16 {vr(S[0],16)}, {vr(KF[0],4)}, {vr(Q,4)}, 0")
    for r in range(16): a(f"v_max_f32 v19, v19, v{S[0]+r}")
    a("s_add_u32 s57, s57, 1024")
    a(f"s_cmp_lt_u32 s57, {WS_KV + 65536}")
    a("s_cbranch_scc1 L_p2_maxloop")
    allreduce32(a, 19, 18, "v_max_f32")
    a("L_p2_fast:")
    for r in range(16): a(f"v_sub_f32 v{C+r}, 0, v19")
    a("s_waitcnt vmcnt(12) lgkmcnt(0)")
    a("s_barrier")
    stamp(a)
    def kread(tt, buf):
        a(f"ds_read_b128 {vr(KF[buf],4)}, v{KA} offset:{tt*1024}")
    def vread(tt, buf):
        for i in range(2):
            a(f"ds_read_b128 {vr(VF[buf]+4*i,4)}, v{VA} offset:{(2*tt+i)*512}")
    NT = 8
    kread(0, 0); kread(1, 1); vread(0, 0)
    a("s_waitcnt lgkmcnt(3)")
    a(f"v_mfma_f32_32x32x16_bf16 {vr(S[0],16)}, {vr(KF[0],4)}, {vr(Q,4)}, {vr(C,16)}")
    a("s_mov_b32 s58, 0")
    a("L_p2_loop:")
    for tt in range(NT):
        sb = S[tt & 1]; sn = S[(tt+1) & 1]
        E = lambda r: a(f"v_exp_f32 v{sb+r}, v{sb+r}")
        for r in range(4): E(r)
        a("s_waitcnt lgkmcnt(2)")
        a(f"v_mfma_f32_32x32x16_bf16 {vr(sn,16)}, {vr(KF[(tt+1)&1],4)}, {vr(Q,4)}, {vr(C,16)}")
        kread(tt+2, tt & 1)
        for r in range(4, 10): E(r)
        a("s_waitcnt lgkmcnt(2)")
        a(f"v_smfmac_f32_32x32x32_bf16 {vr(O,16)}, {vr(VF[tt&1],4)}, {vr(sb,8)}, v{IDX}")
        for r in range(10, 16): E(r)
        vread(tt+1, (tt+1) & 1)
        a("s_waitcnt lgkmcnt(3)")
        a(f"v_smfmac_f32_32x32x32_bf16 {vr(O,16)}, {vr(VF[tt&1]+4,4)}, {vr(sb+8,8)}, v{IDX}")
    a(f"v_add_u32 v{KA}, {NT*1024}, v{KA}")
    a(f"v_add_u32 v{VA}, v{VA}, v{VINC}")
    a("s_cmp_eq_u32 s58, 0")
    a("s_cbranch_scc1 L_job0")
    a("s_cmp_eq_u32 s58, 2")
    a("s_cbranch_scc1 L_job2")
    a("L_job_ret:")
    a("s_add_u32 s58, s58, 1")
    a(f"s_cmp_lt_u32 s58, {64//NT}")
    a("s_cbranch_scc1 L_p2_loop")
    a("s_branch L_p2_done")
    a("L_job0:")
    a("s_waitcnt vmcnt(0)")
    a("s_barrier")
    a("s_cmp_lg_u32 s6, 0")
    a("s_cbranch_scc1 L_job_ret")
    a("s_lshl_b32 s56, s5, 5")
    a("s_add_u32 s56, s56, s4")
    a("s_lshl_b32 s56, s56, 2")
    a(f"s_add_u32 s56, s56, {WS_RDY}")
    a(f"v_mov_b32 v20, s{S_TAG}")
    a("v_mov_b32 v21, 0")
    a("buffer_store_dword v20, v21, s[8:11], s56 offen sc1")
    a("s_branch L_job_ret")
    a("L_job2:")
    a("v_lshlrev_b32 v20, 2, v1")
    a("s_lshl_b32 s56, s5, 7")
    a("v_add_u32 v20, s56, v20")
    a("v_subrev_u32 v21, 32, v1")
    a("v_lshlrev_b32 v21, 7, v21")
    a("s_lshl_b32 s57, s4, 2")
    a("v_add_u32 v21, s57, v21")
    a("s_add_u32 s57, s57, s56")
    a("v_mov_b32 v22, s57")
    a("v_cmp_gt_u32 vcc, 32, v1")
    a("v_cndmask_b32 v21, v21, v20, vcc")
    a("v_cmp_gt_u32 vcc, 40, v1")
    a("v_cndmask_b32 v21, v22, v21, vcc")
    a(f"s_mov_b32 s59, {SPIN_MAX}")
    a(f"s_mov_b32 s56, {WS_RDY}")
    a("L_rdy_poll:")
    a("buffer_load_dword v20, v21, s[8:11], s56 offen sc1")
    a("s_waitcnt vmcnt(0)")
    a(f"v_cmp_ne_u32 vcc, s{S_TAG}, v20")
    a("s_nop 4")
    a("s_cbranch_vccz L_rdy_ok")
    spin_tail(a, "L_rdy_poll", 2)
    a("L_rdy_ok:")
    a("s_cmp_eq_u32 s6, 7")
    a("s_cbranch_scc1 L_job2_w7")
    a("s_mul_i32 s56, s5, 7")
    a("s_add_u32 s56, s56, s6")
    a("s_lshl_b32 s56, s56, 15")
    a(f"s_add_u32 s56, s56, {WS_W1P}")
    for i in range(32):
        if i and i % 4 == 0: a("s_add_u32 s56, s56, 4096")
        a(f"buffer_load_dwordx4 {vr(W1F+4*i,4)}, v2, s[8:11], s56 offen offset:{(i%4)*1024} sc1")
    a("s_branch L_job_ret")
    a("L_job2_w7:")
    a("s_cmp_lg_u32 s2, 0")
    a("s_cbranch_scc1 L_job_ret")
    a(f"s_mov_b32 s59, {SPIN_MAX}")
    a(f"s_mov_b32 s56, {WS_RDY}")
    a("L_gen_poll:")
    a("buffer_load_dwordx4 v[20:23], v2, s[8:11], s56 offen sc1")
    a("s_waitcnt vmcnt(0)")
    a(f"v_xor_b32 v20, s{S_TAG}, v20")
    a(f"v_xor_b32 v21, s{S_TAG}, v21")
    a(f"v_xor_b32 v22, s{S_TAG}, v22")
    a(f"v_xor_b32 v23, s{S_TAG}, v23")
    a("v_or3_b32 v20, v20, v21, v22")
    a("v_or_b32 v20, v20, v23")
    a("v_cmp_ne_u32 vcc, 0, v20")
    a("s_nop 4")
    a("s_cbranch_vccz L_gen_ok")
    spin_tail(a, "L_gen_poll", 4)
    a("L_gen_ok:")
    a(f"v_mov_b32 v20, s{S_TAG}")
    a("v_mov_b32 v21, 0")
    a(f"s_mov_b32 s56, {WS_GEN}")
    a("buffer_store_dword v20, v21, s[8:11], s56 offen sc1")
    a("s_branch L_job_ret")
    a("L_p2_done:")
    stamp(a)
    a("s_nop 7\ns_nop 7")
    a(f"v_rcp_f32 v16, v{O+8}")
    for r in range(8): a(f"v_mul_f32 v{O+r}, v{O+r}, v16")
    for r in range(4): a(f"v_cvt_pk_bf16_f32 v{20+r}, v{O+2*r}, v{O+2*r+1}")
    for r in range(4): a(f"v_min_u32 v{20+r}, -2, v{20+r}")
    chunk_qoh(a, 57)
    a(f"s_add_u32 s56, s57, {WS_O}")
    a("buffer_store_dwordx4 v[20:23], v2, s[8:11], s56 offen sc1")

def poll_chunks(a, name, n, gaddr_s, lds_base_s, code, dbase=96, batch=8, pre=None):
    a(f"s_mov_b32 s59, {SPIN_MAX}")
    L = f"L_poll_{name}"
    a(f"v_add_u32 v3, s{lds_base_s}, v2")
    a(f"{L}:")
    a(f"s_mov_b32 m0, s{lds_base_s}")
    a(f"s_mov_b32 s60, s{gaddr_s}")
    for i in range(n):
        if i and i % 4 == 0:
            a("s_add_u32 s60, s60, 4096")
            a("s_add_u32 m0, m0, 4096")
        a(f"buffer_load_dwordx4 v2, s[8:11], s60 offen offset:{(i%4)*1024} sc1 lds")
    a(f"v_mov_b32 v8, 0")
    a("s_waitcnt vmcnt(0)")
    for b0 in range(0, n, batch):
        nn = min(batch, n - b0)
        for i in range(nn):
            a(f"ds_read_b128 {vr(dbase+4*i,4)}, v3 offset:{(b0+i)*1024}")
        a("s_waitcnt lgkmcnt(0)")
        for i in range(nn):
            r = dbase+4*i
            a(f"v_max3_u32 v8, v{r}, v{r+1}, v8")
            a(f"v_max3_u32 v8, v{r+2}, v{r+3}, v8")
    a(f"v_cmp_eq_u32 vcc, -1, v8")
    a("s_nop 4")
    a(f"s_cbranch_vccz {L}_ok")
    spin_tail(a, L, code)
    a(f"{L}_ok:")

HRES = 92
B1R = 64
B2R = 88
ONES = 60
XF2 = [96, 112]
def phase3(a):
    WOF, ACC, XR = 128, 12, 28
    WOF = 32
    LEX = 65536
    a("s_lshl_b32 s56, s5, 1")
    a(f"s_add_u32 s56, s56, s{S_NT}")
    a("s_lshl_b32 s56, s56, 1")
    a(f"s_add_u32 s56, s56, s{S_KH}")
    a("s_lshl_b32 s56, s56, 14")
    a(f"s_add_u32 s56, s56, {WS_WOP}")
    for i in range(16):
        if i and i % 4 == 0: a("s_add_u32 s56, s56, 4096")
        a(f"buffer_load_dwordx4 {vr(WOF+4*i,4)}, v2, s[8:11], s56 offen offset:{(i%4)*1024} sc1")
    a("v_and_b32 v6, 31, v1")
    a("v_lshrrev_b32 v7, 5, v1")
    a("s_lshl_b32 s56, s4, 6")
    a(f"s_lshl_b32 s57, s{S_MB}, 5")
    a("s_add_u32 s56, s56, s57")
    a("v_add_u32 v9, s56, v6")
    a("v_lshlrev_b32 v9, 10, v9")
    a("v_lshl_add_u32 v9, v7, 3, v9")
    a("s_lshl_b32 s56, s5, 7")
    a(f"s_lshl_b32 s57, s{S_NT}, 6")
    a("s_add_u32 s56, s56, s57")
    a(f"s_lshl_b32 s57, s{S_KH}, 5")
    a("s_add_u32 s92, s56, s57")
    a(f"buffer_load_dwordx2 v[{XR}:{XR+1}], v9, s[12:15], s92 offen")
    a(f"buffer_load_dwordx2 v[{XR+2}:{XR+3}], v9, s[12:15], s92 offen offset:16")
    a("s_barrier")
    a("s_lshl_b32 s54, s4, 16")
    a("s_lshl_b32 s55, s6, 13")
    a("s_add_u32 s54, s54, s55")
    a(f"s_add_u32 s54, s54, {WS_O}")
    poll_chunks(a, "o", 8, 54, 55, 8)
    a("s_barrier")
    stamp(a)
    a(f"s_lshl_b32 s56, s{S_MB}, 15")
    a(f"s_lshl_b32 s57, s{S_KH}, 14")
    a("s_add_u32 s56, s56, s57")
    a("v_add_u32 v10, s56, v2")
    def load_group(g):
        for ii in range(4):
            a(f"ds_read_b128 {vr(XF2[g&1]+4*ii,4)}, v10 offset:{1024*(4*g+ii)}")
    load_group(0)
    for g in range(4):
        if g < 3:
            load_group(g+1)
            a("s_waitcnt lgkmcnt(4)")
        else:
            a("s_waitcnt lgkmcnt(0)")
        for ii in range(4):
            c = "0" if (g == 0 and ii == 0) else vr(ACC,16)
            a(f"v_mfma_f32_32x32x16_bf16 {vr(ACC,16)}, {vr(WOF+16*g+4*ii,4)}, {vr(XF2[g&1]+4*ii,4)}, {c}")
    a("s_nop 7\ns_nop 3")
    a(f"s_cmp_eq_u32 s{S_KH}, 0")
    a("s_cbranch_scc1 L_p3_noswap")
    for r in range(8):
        a(f"v_swap_b32 v{ACC+r}, v{ACC+8+r}")
    a("L_p3_noswap:")
    a("s_lshl_b32 s56, s6, 11")
    a(f"s_add_u32 s56, s56, {LEX}")
    a("v_add_u32 v10, s56, v2")
    a(f"ds_write_b128 v10, v[{ACC+8}:{ACC+11}]")
    a(f"ds_write_b128 v10, v[{ACC+12}:{ACC+15}] offset:1024")
    a("s_waitcnt lgkmcnt(0)")
    a("s_barrier")
    a(f"v_xor_b32 v10, {2*2048}, v10")
    a("ds_read_b128 v[96:99], v10")
    a("ds_read_b128 v[100:103], v10 offset:1024")
    for j in range(4):
        a(f"v_lshlrev_b32 v{104+2*j}, 16, v{XR+j}")
        a(f"v_and_b32 v{105+2*j}, 0xffff0000, v{XR+j}")
    a("s_waitcnt lgkmcnt(0)")
    for r in range(8):
        a(f"v_add_f32 v{ACC+r}, v{ACC+r}, v{96+r}")
    for r in range(8):
        a(f"v_add_f32 v{ACC+r}, v{ACC+r}, v{104+r}")
    for r in range(4):
        a(f"v_cvt_pk_bf16_f32 v{HRES+r}, v{ACC+2*r}, v{ACC+2*r+1}")
    for r in range(4):
        a(f"v_min_u32 v{HRES+r}, -2, v{HRES+r}")
    chunk_qoh(a, 57)
    a(f"s_add_u32 s56, s57, {WS_H}")
    a(f"buffer_store_dwordx4 v[{HRES}:{HRES+3}], v2, s[8:11], s56 offen sc1")
    a(f"v_mov_b32 v{ONES}, 0x3f803f80")
    a("v_mov_b32 v96, 0\nv_mov_b32 v97, 0")
    for j in range(4):
        a(f"v_dot2c_f32_bf16 v96, v{HRES+j}, v{ONES}")
        a(f"v_dot2c_f32_bf16 v97, v{HRES+j}, v{HRES+j}")
    allreduce32(a, 96, 98); allreduce32(a, 97, 99)
    a("v_min_u32 v96, -2, v96\nv_min_u32 v97, -2, v97")
    a("s_lshr_b32 s56, s57, 2")
    a(f"s_add_u32 s56, s56, {WS_ST}")
    a("v_lshlrev_b32 v6, 3, v6")
    a("buffer_store_dwordx2 v[96:97], v6, s[8:11], s56 offen sc1")

LST = 163840 - 512
def phase4(a):
    ACC = [12, 28]; CS = 44; B1F = 72; STAT = 88
    a("s_cmp_eq_u32 s6, 7")
    a("s_cbranch_scc1 L_p4_pre7")
    srd(a, 16, P_B1, 1792*2)
    a("s_mul_i32 s56, s5, 448")
    a("s_lshl_b32 s57, s6, 6")
    a("s_add_u32 s56, s56, s57")
    a("v_lshlrev_b32 v10, 3, v7")
    for g in range(4):
        a(f"buffer_load_dwordx2 v[{B1R+2*g}:{B1R+2*g+1}], v10, s[16:19], s56 offen offset:{16*g}")
    for i in range(1, 4): a(f"v_mov_b32 v{ONES+i}, 0x3f803f80")
    for ks in range(32):
        c = "0" if ks == 0 else vr(CS,16)
        a(f"v_mfma_f32_32x32x16_bf16 {vr(CS,16)}, {vr(W1F+4*ks,4)}, {vr(ONES,4)}, {c}")
    a("L_p4_pre7:")
    a("s_lshl_b32 s54, s4, 16")
    a("s_lshl_b32 s55, s6, 13")
    a("s_add_u32 s54, s54, s55")
    a(f"s_add_u32 s54, s54, {WS_H}")
    poll_chunks(a, "h", 8, 54, 55, 16)
    a("s_barrier")
    stamp(a)
    a("s_cmp_eq_u32 s6, 7")
    a("s_cbranch_scc1 L_p4_stats")
    def load_group(mb, g):
        for ii in range(4):
            a(f"ds_read_b128 {vr(XF2[g&1]+4*ii,4)}, v2 offset:{1024*(32*mb+4*g+ii)}")
    def mma(mb):
        load_group(mb, 0)
        for g in range(8):
            if g < 7:
                load_group(mb, g+1)
                a("s_waitcnt lgkmcnt(4)")
            else:
                a("s_waitcnt lgkmcnt(0)")
            for ii in range(4):
                ks = 4*g + ii
                c = "0" if ks == 0 else vr(ACC[mb],16)
                a(f"v_mfma_f32_32x32x16_bf16 {vr(ACC[mb],16)}, {vr(W1F+4*ks,4)}, {vr(XF2[g&1]+4*ii,4)}, {c}")
    def epi(mb):
        mean, rstd = STAT + 2*mb, STAT + 2*mb + 1
        for r in range(16):
            a(f"v_fma_f32 v{ACC[mb]+r}, -v{mean}, v{CS+r}, v{ACC[mb]+r}")
        for r in range(16):
            a(f"v_fma_f32 v{ACC[mb]+r}, v{ACC[mb]+r}, v{rstd}, v{B1F+r}")
        for r in range(16):
            a(f"v_max_f32 v{ACC[mb]+r}, 0, v{ACC[mb]+r}")
        for r in range(16):
            a(f"v_mul_f32 v{ACC[mb]+r}, v{ACC[mb]+r}, v{ACC[mb]+r}")
        for r in range(8):
            a(f"v_cvt_pk_bf16_f32 v{ACC[mb]+r}, v{ACC[mb]+2*r}, v{ACC[mb]+2*r+1}")
        for r in range(8):
            a(f"v_min_u32 v{ACC[mb]+r}, -2, v{ACC[mb]+r}")
        a(f"buffer_store_dwordx4 {vr(ACC[mb],4)}, v2, s[8:11], s56 offen sc1")
        a(f"buffer_store_dwordx4 {vr(ACC[mb]+4,4)}, v2, s[8:11], s56 offen offset:1024 sc1")
    mma(0)
    for g in range(4):
        for h in range(2):
            a(f"v_lshlrev_b32 v{B1F+4*g+2*h}, 16, v{B1R+2*g+h}")
            a(f"v_and_b32 v{B1F+4*g+2*h+1}, 0xffff0000, v{B1R+2*g+h}")
    a("s_barrier")
    a(f"v_lshlrev_b32 v10, 3, v1")
    a(f"v_and_b32 v10, 0xff, v10")
    a(f"v_add_u32 v10, {LST}, v10")
    a(f"ds_read_b64 v[{STAT}:{STAT+1}], v10")
    a(f"ds_read_b64 v[{STAT+2}:{STAT+3}], v10 offset:256")
    h1_chunk_base(a, 56)
    a("s_waitcnt lgkmcnt(0)")
    epi(0)
    mma(1)
    a(f"s_add_u32 s56, s56, {112*1024}")
    epi(1)
    a("s_branch L_p4_done")
    a("L_p4_stats:")
    a("s_lshl_b32 s54, s4, 14")
    a(f"s_add_u32 s54, s54, {WS_ST}")
    a(f"s_mov_b32 s59, {SPIN_MAX}")
    a("L_st_poll:")
    a("s_mov_b32 s60, s54")
    for i in range(16):
        if i and i % 4 == 0: a("s_add_u32 s60, s60, 4096")
        a(f"buffer_load_dwordx4 {vr(128+4*i,4)}, v2, s[8:11], s60 offen offset:{(i%4)*1024} sc1")
    a("v_mov_b32 v8, 0")
    a("s_waitcnt vmcnt(0)")
    for i in range(16):
        r = 128+4*i
        a(f"v_max3_u32 v8, v{r}, v{r+1}, v8")
        a(f"v_max3_u32 v8, v{r+2}, v{r+3}, v8")
    a(f"v_cmp_eq_u32 vcc, -1, v8")
    a("s_nop 4")
    a(f"s_cbranch_vccz L_st_ok")
    spin_tail(a, "L_st_poll", 32)
    a("L_st_ok:")
    for mb in range(2):
        b = 128 + 32*mb
        for i in range(1, 8):
            for j in range(4):
                a(f"v_add_f32 v{b+j}, v{b+j}, v{b+4*i+j}")
        for j in range(4):
            allreduce16(a, b+j, 96+j)
        for j in range(4):
            allreduce32(a, b+j, 96+j)
        ln_stats(a, b, b+1, 100, 101, 96)
        ln_stats(a, b+2, b+3, 102, 103, 97)
        a("v_and_b32 v10, 15, v1")
        a("v_lshlrev_b32 v10, 4, v10")
        a(f"v_add_u32 v10, {LST + 256*mb}, v10")
        a("ds_write_b128 v10, v[100:103]")
    a("s_waitcnt lgkmcnt(0)")
    a("s_barrier")
    a("L_p4_done:")

def phase5(a):
    W2F = 128
    ACC = [12, 28]
    a("s_lshl_b32 s56, s5, 1")
    a(f"s_add_u32 s56, s56, s{S_NT}")
    a("s_mul_i32 s56, s56, 112")
    a("s_lshr_b32 s57, s6, 1")
    a("s_mul_i32 s58, s57, 28")
    a("s_add_u32 s56, s56, s58")
    a("s_lshl_b32 s56, s56, 10")
    a(f"s_add_u32 s56, s56, {WS_W2P}")
    for i in range(28):
        if i and i % 4 == 0: a("s_add_u32 s56, s56, 4096")
        a(f"buffer_load_dwordx4 {vr(W2F+4*i,4)}, v2, s[8:11], s56 offen offset:{(i%4)*1024} sc1")
    srd(a, 16, P_B2, 1024)
    a("v_lshlrev_b32 v10, 3, v7")
    a(f"buffer_load_dwordx2 v[{B2R}:{B2R+1}], v10, s[16:19], s92 offen")
    a(f"buffer_load_dwordx2 v[{B2R+2}:{B2R+3}], v10, s[16:19], s92 offen offset:16")
    a("s_mul_i32 s55, s6, 14")
    a("s_lshl_b32 s55, s55, 10")
    a("s_mul_i32 s54, s4, 224*1024")
    a("s_add_u32 s54, s54, s55")
    a(f"s_add_u32 s54, s54, {WS_H1}")
    a("s_lshl_b32 s58, s58, 10")
    a("v_add_u32 v11, s58, v2")
    for mb in range(2):
        a("s_barrier")
        poll_chunks(a, f"h1_{mb}", 14, 54, 55, 64 << mb, batch=7)
        a("s_barrier")
        stamp(a)
        def load_group(g):
            for ii in range(4):
                a(f"ds_read_b128 {vr(XF2[g&1]+4*ii,4)}, v11 offset:{1024*(4*g+ii)}")
        load_group(0)
        for g in range(7):
            if g < 6:
                load_group(g+1)
                a("s_waitcnt lgkmcnt(4)")
            else:
                a("s_waitcnt lgkmcnt(0)")
            for ii in range(4):
                ks = 4*g + ii
                c = "0" if ks == 0 else vr(ACC[mb],16)
                a(f"v_mfma_f32_32x32x16_bf16 {vr(ACC[mb],16)}, {vr(W2F+4*ks,4)}, {vr(XF2[g&1]+4*ii,4)}, {c}")
        if mb == 0: a(f"s_add_u32 s54, s54, {112*1024}")
    stamp(a)
    a("s_barrier")
    a("s_lshl_b32 s56, s6, 13")
    a("v_add_u32 v10, s56, v2")
    a("s_nop 7")
    for mb in range(2):
        for j in range(4):
            a(f"ds_write_b128 v10, {vr(ACC[mb]+4*j,4)} offset:{mb*4096 + j*1024}")
    a("s_waitcnt lgkmcnt(0)")
    a("s_barrier")
    a(f"s_lshl_b32 s56, s{S_NT}, 13")
    a(f"s_lshl_b32 s57, s{S_MB}, 12")
    a("s_add_u32 s56, s56, s57")
    a(f"s_lshl_b32 s57, s{S_KH}, 11")
    a("s_add_u32 s56, s56, s57")
    a("v_add_u32 v10, s56, v2")
    for kq in range(4):
        for j in range(2):
            a(f"ds_read_b128 v[{96+8*kq+4*j}:{99+8*kq+4*j}], v10 offset:{kq*16384 + j*1024}")
    for j in range(4):
        a(f"v_lshlrev_b32 v{72+2*j}, 16, v{HRES+j}")
        a(f"v_and_b32 v{73+2*j}, 0xffff0000, v{HRES+j}")
        a(f"v_lshlrev_b32 v{80+2*j}, 16, v{B2R+j}")
        a(f"v_and_b32 v{81+2*j}, 0xffff0000, v{B2R+j}")
    for r in range(8):
        a(f"v_add_f32 v{72+r}, v{72+r}, v{80+r}")
    a("s_waitcnt lgkmcnt(0)")
    for r in range(8):
        a(f"v_add_f32 v{96+r}, v{96+r}, v{104+r}")
        a(f"v_add_f32 v{112+r}, v{112+r}, v{120+r}")
    for r in range(8):
        a(f"v_add_f32 v{96+r}, v{96+r}, v{112+r}")
    for r in range(8):
        a(f"v_add_f32 v{96+r}, v{96+r}, v{72+r}")
    for r in range(4):
        a(f"v_cvt_pk_bf16_f32 v{96+r}, v{96+2*r}, v{97+2*r}")
    srd(a, 20, P_OUT, 2048*1024)
    a("buffer_store_dwordx2 v[96:97], v9, s[20:23], s92 offen")
    a("buffer_store_dwordx2 v[98:99], v9, s[20:23], s92 offen offset:16")

def finish(a):
    a(f"s_cmp_eq_u32 s{S_ERR}, 0")
    a("s_cbranch_scc1 L_noerr")
    srd(a, 16, P_DBG, 256)
    a(f"v_mov_b32 v10, s{S_ERR}")
    a("v_mov_b32 v11, 0")
    a("buffer_atomic_or v10, v11, s[16:19], 0 offen")
    a("L_noerr:")
    a("s_waitcnt vmcnt(0)")
    stamp(a); stamp(a, rt=True)
    stamp_flush(a)
    a("L_end:")
    a("s_endpgm")

def build(path):
    a = Asm()
    NSTAMP[0] = 0
    prologue(a)
    stamp(a, rt=True); stamp(a)
    phase1(a)
    stamp(a)
    repack_stores_and_sentinels(a)
    stamp(a)
    phase2(a)
    phase3(a)
    stamp(a)
    phase4(a)
    stamp(a)
    phase5(a)
    finish(a)
    lines, nins, probs = hazard_pass(a.lines)
    for p in probs: print("WARNING", p)
    print(f"{sum(1 for l in lines if is_instr(l))} instrs, {nins} hazard nops inserted, {NSTAMP[0]} stamps")
    hdr = ["; persistent fused kernel, generated by gen2.py", f"; @launch grid=(256,1,1) block=(512,1,1) lds=163840"]
    body = [f".globl {KNAME}\n.p2align 8\n.type {KNAME},@function\n{KNAME}:"]
    body += ["  " + l if is_instr(l) else l for l in lines]
    desc = f""".p2align 6
.amdhsa_kernel {KNAME}
  .amdhsa_next_free_vgpr 256
  .amdhsa_next_free_sgpr 96
  .amdhsa_accum_offset 256
  .amdhsa_group_segment_fixed_size 0
  .amdhsa_kernarg_size 104
  .amdhsa_user_sgpr_count 2
  .amdhsa_user_sgpr_kernarg_segment_ptr 1
  .amdhsa_system_sgpr_workgroup_id_x 1
  .amdhsa_float_denorm_mode_32 3
.end_amdhsa_kernel"""
    txt = "\n".join(hdr) + '\n.amdgcn_target "amdgcn-amd-amdhsa--gfx950"\n.text\n' + "\n".join(body) + '\n.section .rodata,"a"\n' + desc + "\n"
    open(path, "w").write(txt)

if __name__ == "__main__":
    out = sys.argv[1] if len(sys.argv) > 1 else "p.s"
    build(out)
```
